```python
import torch

def _softmax(x, axis=-1):
    return torch.softmax(x, dim=axis)
def _gelu(x):
    return torch.nn.functional.gelu(x, approximate="tanh")
def _silu(x):
    return torch.nn.functional.silu(x)
def _sigmoid(x):
    return torch.sigmoid(x)
def _layernorm(x, axis=-1, eps=1e-5):
    m = x.mean(dim=axis, keepdim=True)
    v = x.var(dim=axis, keepdim=True, unbiased=False)
    return (x - m) / torch.sqrt(v + eps)
def _scatter_add(tgt, idx, src, axis=0):
    return tgt.clone().index_add_(axis, idx, src)
def _segment_sum(src, seg, n):
    out = torch.zeros((n,) + src.shape[1:], dtype=src.dtype)
    return out.index_add_(0, seg, src)
def _pad(x, pw):
    flat = tuple(v for pair in reversed(pw) for v in pair)
    return torch.nn.functional.pad(x, flat)

kernel_name = 'parallel_sum__mha_block__dense_activation_gelu__prompt'

def setup_inputs():

    _w = (lambda a: (lambda t: t.to(torch.bfloat16) if t.is_floating_point() else t)(torch.as_tensor(a)))
    def _A_setup():
        B, S, D, H = 1, 2048, 512, 32
        return {
            "x": _w((lambda *s: torch.randn(*s, dtype=torch.bfloat16) * 0.05)(B, S, D)),
            "wqkv": _w((lambda *s: torch.randn(*s, dtype=torch.bfloat16) * 0.05)(D, 3 * D)),
            "wo": _w((lambda *s: torch.randn(*s, dtype=torch.bfloat16) * 0.05)(D, D)),
        }
    _A_in = _A_setup()

    def _B_setup():
        B, S, D, F = 1, 2048, 512, 1792
        return {
            "x": _w((lambda *s: torch.randn(*s, dtype=torch.bfloat16) * 0.05)(B, S, D)),
            "w1": _w((lambda *s: torch.randn(*s, dtype=torch.bfloat16) * 0.8)(D, F) * (D ** -0.5)),
            "b1": _w((lambda *s: torch.randn(*s, dtype=torch.bfloat16) * 12.8)(F) * 0.01),
            "w2": _w((lambda *s: torch.randn(*s, dtype=torch.bfloat16) * 0.8)(F, D) * (F ** -0.5)),
            "b2": _w((lambda *s: torch.randn(*s, dtype=torch.bfloat16) * 12.8)(D) * 0.01),
        }
    _B_in = _B_setup()

    return {
        "A_x": _A_in["x"],
        "A_wqkv": _A_in["wqkv"],
        "A_wo": _A_in["wo"],
        "B_x": _B_in["x"],
        "B_w1": _B_in["w1"],
        "B_b1": _B_in["b1"],
        "B_w2": _B_in["w2"],
        "B_b2": _B_in["b2"],
    }

def reference(A_x, A_wqkv, A_wo, B_x, B_w1, B_b1, B_w2, B_b2):
    def _A_ref(x, wqkv, wo):
        B, S, D = x.shape
        H = 32
        Dh = D // H
        qkv = (lambda x, *d: x.permute(*d))((x @ wqkv).reshape(B, S, 3, H, Dh), 2, 0, 3, 1, 4)
        q, k, v = qkv[0], qkv[1], qkv[2]
        scores = torch.einsum("bhqd,bhkd->bhqk", q, k) * (Dh ** -0.5)
        p = _softmax(scores, axis=-1)
        o = torch.einsum("bhqk,bhkd->bhqd", p, v)
        return (lambda x, *d: x.permute(*d))(o, 0, 2, 1, 3).reshape(B, S, D) @ wo

    def _B_ref(x, w1, b1, w2, b2):
        h = torch.einsum("bsd,df->bsf", x, w1) + b1
        h = _gelu(h)
        return torch.einsum("bsf,fd->bsd", h, w2) + b2

    x = A_x
    xn = _layernorm(x, axis=-1)
    return x + _A_ref(xn, A_wqkv, A_wo) + _B_ref(xn, B_w1, B_b1, B_w2, B_b2)
```

```python
HDR = """; generated
"""
def kernel_text(name, body, vgpr=128, sgpr=96, accum=None):
    if accum is None:
        accum = (vgpr + 3) // 4 * 4
    return f""".text
.globl {name}
.p2align 8
.type {name},@function
{name}:
{body}
s_endpgm
.section .rodata,"a"
.p2align 6
.amdhsa_kernel {name}
  .amdhsa_next_free_vgpr {vgpr}
  .amdhsa_next_free_sgpr {sgpr}
  .amdhsa_accum_offset {accum}
  .amdhsa_group_segment_fixed_size 0
  .amdhsa_kernarg_size 88
  .amdhsa_user_sgpr_count 2
  .amdhsa_user_sgpr_kernarg_segment_ptr 1
  .amdhsa_system_sgpr_workgroup_id_x 1
.end_amdhsa_kernel
"""
def file_text(launch_lines, kernels):
    s = "; generated file\n"
    for l in launch_lines:
        s += l + "\n"
    s += '.amdgcn_target "amdgcn-amd-amdhsa--gfx950"\n'
    for k in kernels:
        s += k
    return s
```

```python
import math
from g2 import E, fbits, WS_Q, WS_K, WS_V, WS_ACT, ACT_LD, WS_BYTES

SLOT = 49152
K1_LDS = 3 * SLOT
QSCALE = 0.25 * math.log2(math.e)

def k1_body(instr=False, abl=()):
    e = E()
    def stamp(i):
        return f's_memtime s[{50+2*i}:{51+2*i}]' if instr else ''
    ACC = 64; WF = 32; XF = 128
    vTR = 8
    vCS = 16
    vLane, vT0, vT1, vT2, vD0, vD1, vXA0, vXA1 = 1, 2, 3, 4, 5, 6, 7, 24
    vOne = 25
    vSum = [26, 27]; vSq = [28, 29]
    vXD = 30
    vX0, vX1 = 31, 144
    BIAS = 146
    def acc(mt, j): return ACC + (mt*8 + j)*4
    def wf(j): return WF + j*4
    def xf(b, mt): return XF + b*8 + mt*4
    e(f"""
s_cmp_ge_u32 s2, 208
s_cbranch_scc1 K1_END
s_load_dwordx2 s[4:5], s[0:1], 0         ; x
s_load_dwordx2 s[6:7], s[0:1], 8         ; wqkv
s_load_dwordx2 s[20:21], s[0:1], 32      ; w1
s_load_dwordx2 s[22:23], s[0:1], 40      ; b1
s_load_dwordx2 s[24:25], s[0:1], 80      ; ws
{stamp(0)}
s_lshr_b32 s26, s2, 4                    ; cg
s_and_b32 s27, s2, 15                    ; rb
v_lshrrev_b32 v{vT0}, 6, v0
v_and_b32 v{vLane}, 63, v0
v_readfirstlane_b32 s28, v{vT0}          ; wave
s_and_b32 s29, s28, 3                    ; wr
s_lshr_b32 s30, s28, 2                   ; wc
s_waitcnt lgkmcnt(0)
s_mov_b32 s8, s4
s_mov_b32 s9, s5
s_mov_b32 s10, 2097152
s_mov_b32 s11, 0x00020000
s_mov_b32 s16, s24
s_mov_b32 s17, s25
s_mov_b32 s18, {WS_BYTES}
s_mov_b32 s19, 0x00020000
s_cmp_lt_u32 s26, 6
s_cselect_b32 s12, s6, s20
s_cselect_b32 s13, s7, s21
s_mov_b32 s31, 3584
s_cselect_b32 s31, 3072, s31             ; ld
s_sub_u32 s32, s26, 6
s_cselect_b32 s32, s26, s32
s_lshl_b32 s32, s32, 9
s_lshl_b32 s14, s31, 9                   ; 512*ld
s_mov_b32 s15, 0x00020000
v_lshrrev_b32 v{vT0}, 5, v{vLane}        ; p
s_and_b32 s33, s28, 1
s_lshl_b32 s33, s33, 2
s_lshl_b32 s34, s28, 3                   ; 8w
v_or_b32 v{vT1}, s33, v{vT0}
v_lshlrev_b32 v{vT1}, 1, v{vT1}
v_and_b32 v{vT2}, 31, v{vLane}
v_xor_b32 v{vT1}, v{vT1}, v{vT2}
v_lshlrev_b32 v{vT1}, 4, v{vT1}
v_add_u32 v{vT2}, s34, v{vT0}
v_mul_lo_u32 v{vT2}, v{vT2}, s31
v_add_u32 v{vD0}, v{vT2}, v{vT1}
v_add_u32 v{vT0}, 2, v{vT0}
v_or_b32 v{vT1}, s33, v{vT0}
v_lshlrev_b32 v{vT1}, 1, v{vT1}
v_and_b32 v{vT2}, 31, v{vLane}
v_xor_b32 v{vT1}, v{vT1}, v{vT2}
v_lshlrev_b32 v{vT1}, 4, v{vT1}
v_add_u32 v{vT2}, s34, v{vT0}
v_mul_lo_u32 v{vT2}, v{vT2}, s31
v_add_u32 v{vD1}, v{vT2}, v{vT1}
s_lshl_b32 s35, s31, 2                   ; 4*ld
s_lshl_b32 s36, s31, 6                   ; 64*ld
s_lshl_b32 s37, s28, 12
v_lshrrev_b32 v{vT0}, 3, v{vLane}
v_and_b32 v{vT1}, 7, v{vLane}
v_xor_b32 v{vT1}, v{vT1}, v{vT0}
s_lshl_b32 s38, s27, 7
s_lshl_b32 s39, s28, 4
s_add_u32 s39, s39, s38
v_add_u32 v{vT0}, s39, v{vT0}
v_lshlrev_b32 v{vT0}, 10, v{vT0}
v_lshl_add_u32 v{vXD}, v{vT1}, 4, v{vT0}
s_lshl_b32 s39, s28, 11
s_add_u32 s39, s39, 32768
""")
    def dma(stage):
        slot = stage % 3
        t = ""
        for i in range(4):
            t += f"""s_add_u32 m0, s37, {slot*SLOT + i*1024}
s_mul_i32 s40, s36, {stage}
s_add_u32 s40, s40, s32
{"s_add_u32 s40, s40, s35" if i >= 2 else "s_nop 0"}
buffer_load_dwordx4 v{vD0 if (i&1)==0 else vD1}, s[12:15], s40 offen lds
"""
        for i in range(2):
            t += f"""s_add_u32 m0, s39, {slot*SLOT + i*1024}
s_mov_b32 s40, {stage*128 + i*8192}
buffer_load_dwordx4 v{vXD}, s[8:11], s40 offen lds
"""
        return t
    e(dma(0)); e(dma(1))
    e(f"""
v_lshrrev_b32 v{vT0}, 4, v{vLane}        ; g
v_and_b32 v{vT1}, 15, v{vLane}
v_lshrrev_b32 v{vT2}, 2, v{vT1}          ; r
v_and_b32 v{vT1}, 3, v{vT1}              ; c
v_lshl_add_u32 v{vSq[0]}, v{vT0}, 3, v{vT2}
v_lshlrev_b32 v{vSq[0]}, 9, v{vSq[0]}
v_lshl_add_u32 v{vSq[0]}, v{vT1}, 3, v{vSq[0]}
v_and_b32 v{vT0}, 1, v{vT0}
v_lshl_or_b32 v{vT2}, v{vT0}, 2, v{vT2}
s_lshl_b32 s40, s30, 3
""")
    for j in range(8):
        e(f"""s_add_u32 s41, s40, {j}
v_xor_b32 v{vT0}, s41, v{vT2}
v_lshl_add_u32 v{vTR+j}, v{vT0}, 5, v{vSq[0]}""")
    e(f"""
v_and_b32 v{vT0}, 15, v{vLane}
s_lshl_b32 s40, s29, 5
v_add_u32 v{vT0}, s40, v{vT0}
v_lshlrev_b32 v{vT0}, 7, v{vT0}
v_add_u32 v{vT0}, 32768, v{vT0}
v_lshrrev_b32 v{vT1}, 4, v{vLane}
v_and_b32 v{vT2}, 7, v{vLane}
v_xor_b32 v{vT1}, v{vT1}, v{vT2}
v_lshl_add_u32 v{vXA0}, v{vT1}, 4, v{vT0}
v_xor_b32 v{vXA1}, 64, v{vXA0}
v_mov_b32 v{vOne}, 0x3f803f80
""")
    for j in range(8):
        e(f"v_mov_b32 v{vCS+j}, 0")
    for r in range(64):
        e(f"v_mov_b32 v{ACC+r}, 0")
    e(f"""
v_mov_b32 v{vSum[0]}, 0
v_mov_b32 v{vSum[1]}, 0
v_mov_b32 v{vSq[0]}, 0
v_mov_b32 v{vSq[1]}, 0
""")
    e(f"""
s_mov_b32 s4, s22
s_mov_b32 s5, s23
s_mov_b32 s6, 3584
s_mov_b32 s7, 0x00020000
s_lshl_b32 s46, s30, 8
s_add_u32 s45, s32, s46
v_lshrrev_b32 v{vT0}, 4, v{vLane}
v_lshlrev_b32 v{vT0}, 3, v{vT0}
""")
    for j in range(8):
        e(f"buffer_load_dwordx2 v[{BIAS+2*j}:{BIAS+2*j+1}], v{vT0}, s[4:7], s45 offen offset:{j*32}")
    WF2 = 194
    def wfb(b, j): return (WF if b == 0 else WF2) + j*4
    def rd_frags(n):
        st, kk = n >> 1, n & 1
        b = n & 1
        koff = kk*16384
        xa = vXA0 if kk == 0 else vXA1
        t = ""
        for mt in range(2):
            t += f"ds_read_b128 v[{xf(b,mt)}:{xf(b,mt)+3}], v{xa} offset:{mt*2048}\n"
        for j in range(8):
            t += f"ds_read_b64_tr_b16 v[{wfb(b,j)}:{wfb(b,j)+1}], v{vTR+j} offset:{koff}\n"
            t += f"ds_read_b64_tr_b16 v[{wfb(b,j)+2}:{wfb(b,j)+3}], v{vTR+j} offset:{koff+2048}\n"
        return t
    def adv_addr(st):
        d = SLOT if (st % 3) != 0 else -2*SLOT
        ds = d if d > 0 else hex(d & 0xffffffff)
        t = ""
        for j in range(8):
            t += f"v_add_u32 v{vTR+j}, {ds}, v{vTR+j}\n"
        t += f"v_add_u32 v{vXA0}, {ds}, v{vXA0}\nv_add_u32 v{vXA1}, {ds}, v{vXA1}\n"
        return t
    if 'twice' in abl:
        e("s_mov_b32 s78, 0\nK1_AGAIN:")
    if 'fine' in abl: e("s_mov_b32 s74, 0\ns_mov_b32 s75, 0\ns_mov_b32 s76, 0\ns_memtime s[70:71]")
    e("s_waitcnt vmcnt(14) lgkmcnt(0)")
    if 'fine' in abl: e("s_memtime s[72:73]\ns_waitcnt lgkmcnt(0)\ns_sub_u32 s77, s72, s70")
    e("s_barrier")
    e(dma(2))
    e(rd_frags(0))
    for n in range(16):
        st, kk = n >> 1, n & 1
        b = n & 1
        if 'fine' in abl: e("s_memtime s[70:71]\ns_waitcnt lgkmcnt(0)")
        e("s_waitcnt lgkmcnt(0)")
        if 'fine' in abl: e("s_memtime s[72:73]\ns_waitcnt lgkmcnt(0)\ns_sub_u32 s72, s72, s70\ns_add_u32 s74, s74, s72")
        if kk == 1 and st < 7:
            if 'fine' in abl: e("s_memtime s[70:71]")
            e(f"s_waitcnt vmcnt({6 if st + 2 < 8 else 0})")
            if 'fine' in abl: e("s_memtime s[72:73]\ns_waitcnt lgkmcnt(0)\ns_sub_u32 s72, s72, s70\ns_add_u32 s75, s75, s72\ns_memtime s[70:71]")
            e("s_barrier")
            if 'fine' in abl: e("s_memtime s[72:73]\ns_waitcnt lgkmcnt(0)\ns_sub_u32 s72, s72, s70\ns_add_u32 s76, s76, s72")
            if st + 3 < 8 and 'nodma' not in abl:
                e(dma(st + 3))
            e(adv_addr(st + 1))
        rl = [x for x in rd_frags(n + 1).split("\n") if x.strip()] if n + 1 < 16 else []
        idx = 0
        for j in range(8):
            for mt in range(2):
                if 'nomfma' not in abl:
                    e(f"v_mfma_f32_16x16x32_bf16 v[{acc(mt,j)}:{acc(mt,j)+3}], v[{wfb(b,j)}:{wfb(b,j)+3}], v[{xf(b,mt)}:{xf(b,mt)+3}], v[{acc(mt,j)}:{acc(mt,j)+3}]")
                take = 2 if idx < 2 else 1
                for _ in range(take):
                    if rl: e(rl.pop(0))
                idx += 1
                if 'nodot' not in abl and mt == 1:
                    m2 = j & 1; q = j >> 1
                    e(f"v_dot2c_f32_bf16 v{vSum[m2]}, v{xf(b,m2)+q}, v{vOne}\nv_dot2c_f32_bf16 v{vSq[m2]}, v{xf(b,m2)+q}, v{xf(b,m2)+q}")
        for x in rl: e(x)
        if 'nodot' not in abl:
            e(f"s_cmp_lg_u32 s29, {n & 3}\ns_cbranch_scc1 K1_CS_{n}")
            for j in range(8):
                for q in range(4):
                    e(f"v_dot2c_f32_bf16 v{vCS+j}, v{wfb(b,j)+q}, v{vOne}")
            e(f"K1_CS_{n}:")
    if 'twice' in abl:
        e(f"""s_cmp_eq_u32 s78, 1
s_cbranch_scc1 K1_AGAIN_DONE
s_mov_b32 s78, 1
s_waitcnt vmcnt(0) lgkmcnt(0)
s_barrier
{stamp(0)}
""" + dma(0) + dma(1) + "".join(f"buffer_load_dwordx2 v[{BIAS+2*j}:{BIAS+2*j+1}], v{vT0}, s[4:7], s45 offen offset:{j*32}\n" for j in range(8)) + "".join(adv_addr(x) for x in (8, 9)) + "s_branch K1_AGAIN\nK1_AGAIN_DONE:")
    e(stamp(1))
    vals = vSum + vSq + [vCS+j for j in range(8)]
    tmp = [WF+i for i in range(12)]
    e("s_nop 7")
    for v, t in zip(vals, tmp):
        e(f"ds_swizzle_b32 v{t}, v{v} offset:0x401F")
    e("s_waitcnt lgkmcnt(0)")
    for v, t in zip(vals, tmp):
        e(f"v_add_f32 v{v}, v{v}, v{t}")
    for v, t in zip(vals, tmp):
        e(f"v_mov_b32 v{t}, v{v}")
    e("s_nop 1")
    for v, t in zip(vals, tmp):
        e(f"v_permlane32_swap_b32 v{v}, v{t}")
    e("s_nop 1")
    for v, t in zip(vals, tmp):
        e(f"v_add_f32 v{v}, v{v}, v{t}")
    def rbf(v, t):
        return f"v_cvt_pk_bf16_f32 v{t}, v{v}, v{v}\nv_lshlrev_b32 v{v}, 16, v{t}"
    for mt in range(2):
        s_, q_ = vSum[mt], vSq[mt]
        e(f"""
v_mul_f32 v{s_}, {fbits(1.0/512)}, v{s_}
v_mul_f32 v{q_}, {fbits(1.0/512)}, v{q_}
v_fma_f32 v{q_}, -v{s_}, v{s_}, v{q_}
v_max_f32 v{q_}, 0, v{q_}
{rbf(s_, vT0)}
{rbf(q_, vT0)}
v_add_f32 v{q_}, {fbits(1e-5)}, v{q_}
{rbf(q_, vT0)}
v_sqrt_f32 v{q_}, v{q_}
s_nop 0
{rbf(q_, vT0)}
v_rcp_f32 v{q_}, v{q_}
s_nop 0
v_mul_f32 v{s_}, v{s_}, v{q_}
""")
    RT = vSq; MRT = vSum
    e(f"""
s_lshl_b32 s40, s29, 8
s_lshl_b32 s41, s30, 7
s_add_u32 s40, s40, s41
v_and_b32 v{vT0}, 15, v{vLane}
v_add_u32 v{vT0}, s40, v{vT0}
v_lshlrev_b32 v{vT0}, 2, v{vT0}
v_cmp_gt_u32 vcc, 16, v{vLane}
s_and_saveexec_b64 s[42:43], vcc
""")
    for j in range(8):
        e(f"ds_write_b32 v{vT0}, v{vCS+j} offset:{j*64}")
    e(f"""s_mov_b64 exec, s[42:43]
s_waitcnt lgkmcnt(0)
s_barrier
v_lshrrev_b32 v{vT0}, 4, v{vLane}
v_lshlrev_b32 v{vT0}, 4, v{vT0}
s_lshl_b32 s41, s30, 9
v_add_u32 v{vT0}, s41, v{vT0}
v_and_b32 v{vT1}, 15, v{vLane}
s_lshl_b32 s40, s29, 5
s_add_u32 s38, s38, s40
v_add_u32 v{vT1}, s38, v{vT1}            ; token
v_lshrrev_b32 v{vT2}, 4, v{vLane}        ; g
""")
    CSV = 162
    for j in range(8):
        for w4 in range(4):
            e(f"ds_read_b128 v[{WF+(j%2)*16+4*w4}:{WF+(j%2)*16+4*w4+3}], v{vT0} offset:{j*64 + w4*1024}")
        e("s_waitcnt lgkmcnt(0)" if j % 2 == 1 or True else "")
        b0 = WF+(j%2)*16
        for r in range(4):
            e(f"v_add_f32 v{b0+r}, v{b0+r}, v{b0+4+r}\nv_add_f32 v{b0+8+r}, v{b0+8+r}, v{b0+12+r}")
        for r in range(4):
            e(f"v_add_f32 v{CSV+4*j+r}, v{b0+r}, v{b0+8+r}")
    e(stamp(2))
    e(f"""
s_cmp_ge_u32 s26, 6
s_cbranch_scc1 K1_EPI_H
s_cmp_lt_u32 s26, 2
s_cselect_b32 s44, {fbits(QSCALE)}, 1.0
v_mul_f32 v{RT[0]}, s44, v{RT[0]}
v_mul_f32 v{RT[1]}, s44, v{RT[1]}
v_mul_f32 v{MRT[0]}, s44, v{MRT[0]}
v_mul_f32 v{MRT[1]}, s44, v{MRT[1]}
s_cmp_lt_u32 s26, 4
s_cbranch_scc0 K1_EPI_V
v_lshrrev_b32 v{vX0}, 1, v{vT2}
v_lshlrev_b32 v{vX0}, 15, v{vX0}
v_lshl_add_u32 v{vX0}, v{vT1}, 4, v{vX0}
v_and_b32 v{vX1}, 1, v{vT2}
v_lshl_add_u32 v{vX0}, v{vX1}, 3, v{vX0}
v_add_u32 v{vX1}, 256, v{vX0}
s_branch K1_EPI_QKV
K1_EPI_V:
v_lshlrev_b32 v{vX0}, 5, v{vT1}
v_lshl_add_u32 v{vX0}, v{vT2}, 3, v{vX0}
v_add_u32 v{vX1}, 512, v{vX0}
K1_EPI_QKV:
s_lshr_b32 s45, s26, 1
s_lshl_b32 s45, s45, 21
s_and_b32 s46, s26, 1
s_lshl_b32 s46, s46, 4
s_lshl_b32 s47, s30, 3
s_add_u32 s46, s46, s47
s_lshl_b32 s46, s46, 16
s_add_u32 s45, s45, s46
""")
    for j in range(8):
        for mt in range(2):
            a = acc(mt, j)
            for r in range(4):
                e(f"v_mul_f32 v{a+r}, v{a+r}, v{RT[mt]}\nv_fma_f32 v{a+r}, -v{MRT[mt]}, v{CSV+4*j+r}, v{a+r}")
            e(f"""v_cvt_pk_bf16_f32 v{a}, v{a}, v{a+1}
v_cvt_pk_bf16_f32 v{a+1}, v{a+2}, v{a+3}
buffer_store_dwordx2 v[{a}:{a+1}], v{vX0 if mt==0 else vX1}, s[16:19], s45 offen""")
        e("s_add_u32 s45, s45, 65536")
    e("s_branch K1_DONE")
    A_ = -2.0*0.7978845608028654*math.log2(math.e); B_ = A_*0.044715
    e(f"""
K1_EPI_H:
s_mov_b32 s46, {ACT_LD}
v_mul_lo_u32 v{vX0}, v{vT1}, s46
v_lshl_add_u32 v{vX0}, v{vT2}, 3, v{vX0}
v_add_u32 v{vX1}, {16*ACT_LD}, v{vX0}
s_add_u32 s47, s45, {WS_ACT + 1024}
v_mov_b32 v{vD1}, {fbits(A_)}
s_waitcnt vmcnt(0)
""")
    T = WF
    for j in range(8):
        e(f"""v_lshlrev_b32 v{T+8}, 16, v{BIAS+2*j}
v_and_b32 v{T+9}, 0xffff0000, v{BIAS+2*j}
v_lshlrev_b32 v{T+10}, 16, v{BIAS+2*j+1}
v_and_b32 v{T+11}, 0xffff0000, v{BIAS+2*j+1}""")
        for mt in range(2):
            a = acc(mt, j)
            for r in range(4):
                e(f"v_fma_f32 v{T+r}, -v{MRT[mt]}, v{CSV+4*j+r}, v{T+8+r}")
            for r in range(4):
                e(f"v_fma_f32 v{a+r}, v{a+r}, v{RT[mt]}, v{T+r}")
            for r in range(4):
                e(f"v_mul_f32 v{T+r}, v{a+r}, v{a+r}")
            for r in range(4):
                e(f"v_fmamk_f32 v{T+r}, v{T+r}, {fbits(B_)}, v{vD1}")
            for r in range(4):
                e(f"v_mul_f32 v{T+r}, v{T+r}, v{a+r}")
            for r in range(4):
                e(f"v_exp_f32 v{T+r}, v{T+r}")
            for r in range(4):
                e(f"v_add_f32 v{T+r}, 1.0, v{T+r}")
            for r in range(4):
                e(f"v_rcp_f32 v{T+r}, v{T+r}")
            for r in range(4):
                e(f"v_mul_f32 v{a+r}, v{a+r}, v{T+r}")
            e(f"""v_cvt_pk_bf16_f32 v{a}, v{a}, v{a+1}
v_cvt_pk_bf16_f32 v{a+1}, v{a+2}, v{a+3}
buffer_store_dwordx2 v[{a}:{a+1}], v{vX0 if mt==0 else vX1}, s[16:19], s47 offen offset:{j*32}""")
    e("K1_DONE:")
    e(stamp(3))
    e("s_waitcnt vmcnt(0)")
    e(stamp(4))
    if instr:
        e(f"""s_waitcnt lgkmcnt(0)
s_lshl_b32 s48, s2, 3
s_add_u32 s48, s48, s28
s_lshl_b32 s48, s48, 6
s_add_u32 s48, s48, 0x2000000
v_mov_b32 v1, s48
""")
        for i in range(5):
            e(f"v_mov_b32 v{2+2*i}, s{50+2*i}\nv_mov_b32 v{3+2*i}, s{51+2*i}")
        e("""buffer_store_dwordx4 v[2:5], v1, s[16:19], 0 offen
buffer_store_dwordx4 v[6:9], v1, s[16:19], 0 offen offset:16
buffer_store_dwordx4 v[10:13], v1, s[16:19], 0 offen offset:32
v_mov_b32 v2, s74
v_mov_b32 v3, s75
v_mov_b32 v4, s76
v_mov_b32 v5, s77
buffer_store_dwordx4 v[2:5], v1, s[16:19], 0 offen offset:48
s_waitcnt vmcnt(0)""")
    e("K1_END:")
    return e.text()

if __name__ == "__main__":
    from asmlib import *
    import sys
    open("k1only.s", "w").write(file_text([f"; @launch kernel=k1_kernel grid=(208,1,1) block=(512,1,1) lds={K1_LDS}"], [kernel_text("k1_kernel", k1_body(instr=True, abl=tuple(sys.argv[1:])), vgpr=226)]))
```

```python
import struct
WS_Q = 0x000000; WS_K = 0x200000; WS_V = 0x400000; WS_ACT = 0x600000
ACT_LD = 4608
WS_BYTES = 268435456

def fbits(f):
    return "0x%08x" % struct.unpack("<I", struct.pack("<f", f))[0]

class E:
    def __init__(s): s.l = []
    def __call__(s, t):
        for x in t.strip("\n").split("\n"):
            s.l.append(x)
    def text(s): return "\n".join(s.l)

K2_LDS = 65536 + 8704

def k2_body(instr=False, abl=(), nwg=256):
    e = E()
    S = [16, 32]; NEGM = 48; O = 64; PB = 80; QF = 88; KF = 92; VF = 96; OS = 104
    vT0, vT1, vMx, vKa, vKn, vVa, vVn, vLK, vLV, vMsk, vClamp, vD, vF, vL16 = 1, 2, 3, 4, 5, 6, 7, 8, 9, 10, 11, 12, 13, 14
    CONST = 65536
    THR = 65536.0
    e(f"""
s_cmp_ge_u32 s2, {nwg}
s_cbranch_scc1 K2_END
s_load_dwordx2 s[4:5], s[0:1], 80
{"s_memtime s[40:41]" if instr else ""}
{"s_memrealtime s[42:43]" if instr else ""}
v_lshrrev_b32 v{vT0}, 6, v0
s_nop 0
v_readfirstlane_b32 s12, v{vT0}
s_and_b32 s13, s2, 31                    ; head
s_lshr_b32 s14, s2, 5
v_and_b32 v{vT1}, 63, v0                 ; lane
v_and_b32 v{vMx}, 5, v0
v_cmp_eq_u32 vcc, 0, v{vMx}
v_mov_b32 v{vD}, 0
v_mov_b32 v{vF}, 0x3f80
s_nop 1
v_cndmask_b32 v{vD}, v{vD}, v{vF}, vcc
v_lshlrev_b32 v{vF}, 2, v0
v_add_u32 v{vF}, {CONST}, v{vF}
ds_write_b32 v{vF}, v{vD}
ds_write_b32 v{vF}, v{vD} offset:2048
ds_write_b32 v{vF}, v{vD} offset:4096
ds_write_b32 v{vF}, v{vD} offset:6144
v_cmp_gt_u32 vcc, 128, v0
s_and_saveexec_b64 s[20:21], vcc
ds_write_b32 v{vF}, v{vD} offset:8192
s_mov_b64 exec, s[20:21]
s_waitcnt lgkmcnt(0)
s_mov_b32 s8, s4
s_mov_b32 s9, s5
s_mov_b32 s10, {WS_BYTES}
s_mov_b32 s11, 0x00020000
s_lshl_b32 s15, s13, 16                  ; head*65536
s_lshr_b32 s16, s12, 2
s_lshl_b32 s16, s16, 15
s_and_b32 s17, s12, 3
s_lshl_b32 s17, s17, 10
s_add_u32 s16, s16, s17
s_add_u32 s16, s16, s15
s_add_u32 s16, s16, {WS_K}
s_lshl_b32 s17, s12, 10
s_add_u32 s17, s17, s15
s_add_u32 s17, s17, {WS_V}
s_lshr_b32 s18, s12, 2
s_lshl_b32 s18, s18, 12
s_and_b32 s19, s12, 3
s_lshl_b32 s19, s19, 10
s_add_u32 s18, s18, s19
s_lshl_b32 s19, s12, 10
s_add_u32 s19, s19, 8192
v_lshlrev_b32 v{vL16}, 4, v{vT1}
; Q load
v_lshrrev_b32 v{vT0}, 5, v{vT1}
v_lshlrev_b32 v{vT0}, 15, v{vT0}
v_and_b32 v{vMx}, 31, v{vT1}
s_lshl_b32 s20, s14, 8
s_lshl_b32 s21, s12, 5
s_add_u32 s20, s20, s21
v_add_u32 v{vMx}, s20, v{vMx}
v_lshl_add_u32 v{vT0}, v{vMx}, 4, v{vT0}
s_add_u32 s21, s15, {WS_Q}
v_add_u32 v{vT0}, s21, v{vT0}
buffer_load_dwordx4 v[{QF}:{QF+3}], v{vT0}, s[8:11], 0 offen
s_mov_b32 s23, 0
""")
    def dma_issue():
        return f"""
s_and_b32 s22, s23, 7
s_lshl_b32 s27, s22, 12
s_add_u32 s27, s27, s16
s_and_b32 s28, s23, 3
s_lshl_b32 s28, s28, 14
s_add_u32 s29, s18, s28
s_mov_b32 m0, s29
s_nop 0
buffer_load_dwordx4 v{vL16}, s[8:11], s27 offen lds
s_lshl_b32 s27, s22, 13
s_add_u32 s27, s27, s17
s_add_u32 s29, s19, s28
s_mov_b32 m0, s29
s_nop 0
buffer_load_dwordx4 v{vL16}, s[8:11], s27 offen lds
s_add_u32 s23, s23, 1
"""
    for c in range(3):
        e(dma_issue())
    e(f"""
v_lshrrev_b32 v{vT0}, 5, v{vT1}          ; half
v_lshlrev_b32 v{vLK}, 12, v{vT0}
v_and_b32 v{vMx}, 31, v{vT1}
v_lshl_add_u32 v{vLK}, v{vMx}, 4, v{vLK}
v_and_b32 v{vMx}, 15, v{vT1}
v_lshrrev_b32 v{vD}, 2, v{vMx}
v_lshlrev_b32 v{vD}, 5, v{vD}
v_and_b32 v{vMx}, 3, v{vMx}
v_lshl_add_u32 v{vD}, v{vMx}, 3, v{vD}
v_lshl_add_u32 v{vLV}, v{vT0}, 7, v{vD}
v_add_u32 v{vLV}, 8192, v{vLV}
v_xor_b32 v{vF}, 1, v{vT0}
v_lshl_add_u32 v{vD}, v{vF}, 7, v{vD}
v_add_u32 v{vD}, {CONST}, v{vD}
v_and_b32 v{vMx}, 16, v{vT1}
v_cmp_eq_u32 vcc, 0, v{vMx}
v_mov_b32 v{vMsk}, 0
v_mov_b32 v{vF}, -1
s_nop 1
v_cndmask_b32 v{vMsk}, v{vMsk}, v{vF}, vcc
v_cndmask_b32 v{vLV}, v{vD}, v{vLV}, vcc
v_mov_b32 v{vClamp}, 0xff800000
s_mov_b32 s21, {fbits(THR)}
""")
    for r in range(16):
        e(f"v_mov_b32 v{NEGM+r}, 0\nv_mov_b32 v{O+r}, 0")
    sync = "s_waitcnt vmcnt(2) lgkmcnt(0)\ns_barrier\n" + dma_issue()
    addr = f"""
s_add_u32 s26, s24, 16384
s_and_b32 s26, s26, 65535
v_add_u32 v{vKa}, s24, v{vLK}
v_add_u32 v{vKn}, s26, v{vLK}
v_and_b32 v{vT0}, s24, v{vMsk}
v_add_u32 v{vVa}, v{vT0}, v{vLV}
v_and_b32 v{vT0}, s26, v{vMsk}
v_add_u32 v{vVn}, v{vT0}, v{vLV}
"""
    e(f"""
s_mov_b32 s24, 0
s_mov_b32 s25, 0
{sync}
{addr}
s_branch K2_SCAN
K2_CHUNK:
""")
    for r in range(16):
        e(f"v_mov_b32 v{OS+r}, v{O+r}")
    for j in range(8):
        cur = S[j & 1]; nxt = S[1 - (j & 1)]
        if j + 2 < 8: ka = f"v{vKa} offset:{(j+2)*512}"
        else: ka = f"v{vKn} offset:{(j+2-8)*512}" if (j+2-8) else f"v{vKn}"
        e(f"""
; ---- tile {j}
s_waitcnt lgkmcnt(4)
v_mfma_f32_32x32x16_bf16 v[{nxt}:{nxt+15}], v[{KF}:{KF+3}], v[{QF}:{QF+3}], v[{NEGM}:{NEGM+15}]
ds_read_b128 v[{KF}:{KF+3}], {ka}""")
        for r in range(8):
            e(f"v_exp_f32 v{cur+r}, v{cur+r}")
        for r in range(4):
            e(f"v_cvt_pk_bf16_f32 v{PB+r}, v{cur+2*r}, v{cur+2*r+1}")
        e(f"""v_exp_f32 v{cur+8}, v{cur+8}
s_waitcnt lgkmcnt(1)
v_mfma_f32_32x32x16_bf16 v[{O}:{O+15}], v[{VF}:{VF+3}], v[{PB}:{PB+3}], v[{O}:{O+15}]""")
        for r in range(9, 16):
            e(f"v_exp_f32 v{cur+r}, v{cur+r}")
        for r in range(4, 8):
            e(f"v_cvt_pk_bf16_f32 v{PB+r}, v{cur+2*r}, v{cur+2*r+1}")
        e(f"s_nop 1\nv_mfma_f32_32x32x16_bf16 v[{O}:{O+15}], v[{VF+4}:{VF+7}], v[{PB+4}:{PB+7}], v[{O}:{O+15}]")
        for q in range(4):
            if j + 1 < 8:
                e(f"ds_read_b64_tr_b16 v[{VF+2*q}:{VF+2*q+1}], v{vVa} offset:{(j+1)*1024 + q*256}")
            else:
                off = q*256
                e(f"ds_read_b64_tr_b16 v[{VF+2*q}:{VF+2*q+1}], v{vVn}" + (f" offset:{off}" if off else ""))
    e(f"""
s_add_u32 s25, s25, 1
s_nop 7
s_nop 7
v_cmp_nge_f32 vcc, s21, v{O+8}
s_cbranch_vccnz K2_REDO
s_cmp_eq_u32 s25, 8
s_cbranch_scc1 K2_DONE
s_mov_b32 s24, s26
{sync}
{addr}
s_branch K2_CHUNK
K2_REDO:
s_sub_u32 s25, s25, 1
""")
    for r in range(16):
        e(f"v_mov_b32 v{O+r}, v{OS+r}")
    e(f"""
K2_SCAN:
s_waitcnt lgkmcnt(0)
v_mov_b32 v{vMx}, 0xff800000
""")
    A = S[0]
    for t in range(8):
        e(f"""ds_read_b128 v[{KF}:{KF+3}], v{vKa} offset:{t*512}
s_waitcnt lgkmcnt(0)
v_mfma_f32_32x32x16_bf16 v[{A}:{A+15}], v[{KF}:{KF+3}], v[{QF}:{QF+3}], v[{NEGM}:{NEGM+15}]
s_nop 15
s_nop 3""")
        for r in range(0, 16, 2):
            e(f"v_max3_f32 v{vMx}, v{A+r}, v{A+r+1}, v{vMx}")
    e(f"""
v_mov_b32 v{vT0}, v{vMx}
s_nop 1
v_permlane32_swap_b32 v{vMx}, v{vT0}
s_nop 1
v_max_f32 v{vMx}, v{vMx}, v{vT0}
v_max_f32 v{vD}, v{vMx}, v{vClamp}
v_exp_f32_e64 v{vF}, -v{vD}
s_nop 0
v_min_f32 v{vF}, 1.0, v{vF}
""")
    for r in range(16):
        e(f"v_sub_f32 v{NEGM+r}, v{NEGM+r}, v{vD}")
    for r in range(16):
        e(f"v_mul_f32 v{O+r}, v{O+r}, v{vF}")
    e(f"""
v_mov_b32 v{vClamp}, 0
ds_read_b128 v[{KF}:{KF+3}], v{vKa}
s_waitcnt lgkmcnt(0)
v_mfma_f32_32x32x16_bf16 v[{S[0]}:{S[0]+15}], v[{KF}:{KF+3}], v[{QF}:{QF+3}], v[{NEGM}:{NEGM+15}]
ds_read_b128 v[{KF}:{KF+3}], v{vKa} offset:512
ds_read_b64_tr_b16 v[{VF}:{VF+1}], v{vVa}
ds_read_b64_tr_b16 v[{VF+2}:{VF+3}], v{vVa} offset:256
ds_read_b64_tr_b16 v[{VF+4}:{VF+5}], v{vVa} offset:512
ds_read_b64_tr_b16 v[{VF+6}:{VF+7}], v{vVa} offset:768
s_nop 7
s_branch K2_CHUNK
K2_DONE:
{"s_memtime s[44:45]" if instr else ""}
{"s_memrealtime s[46:47]" if instr else ""}
s_nop 7
v_rcp_f32 v{vF}, v{O+8}
s_nop 0
""")
    for r in range(8):
        e(f"v_mul_f32 v{O+r}, v{O+r}, v{vF}")
    e(f"""
v_cvt_pk_bf16_f32 v{PB}, v{O}, v{O+1}
v_cvt_pk_bf16_f32 v{PB+1}, v{O+2}, v{O+3}
v_cvt_pk_bf16_f32 v{PB+2}, v{O+4}, v{O+5}
v_cvt_pk_bf16_f32 v{PB+3}, v{O+6}, v{O+7}
v_and_b32 v{vT1}, 63, v0
v_and_b32 v{vMx}, 31, v{vT1}
v_add_u32 v{vMx}, s20, v{vMx}
s_mov_b32 s27, {ACT_LD}
v_mul_lo_u32 v{vMx}, v{vMx}, s27
v_lshrrev_b32 v{vT0}, 5, v{vT1}
v_lshl_add_u32 v{vMx}, v{vT0}, 3, v{vMx}
s_lshl_b32 s27, s13, 5
s_add_u32 s27, s27, {WS_ACT}
v_add_u32 v{vMx}, s27, v{vMx}
buffer_store_dwordx2 v[{PB}:{PB+1}], v{vMx}, s[8:11], 0 offen
buffer_store_dwordx2 v[{PB+2}:{PB+3}], v{vMx}, s[8:11], 0 offen offset:16
""")
    if instr:
        e(f"""
s_waitcnt lgkmcnt(0)
s_lshl_b32 s48, s2, 3
s_add_u32 s48, s48, s12
s_lshl_b32 s48, s48, 5
s_add_u32 s48, s48, 0x1000000
v_mov_b32 v16, s40
v_mov_b32 v17, s41
v_mov_b32 v18, s42
v_mov_b32 v19, s43
v_mov_b32 v20, s44
v_mov_b32 v21, s45
v_mov_b32 v22, s46
v_mov_b32 v23, s47
v_mov_b32 v24, s48
buffer_store_dwordx4 v[16:19], v24, s[8:11], 0 offen
buffer_store_dwordx4 v[20:23], v24, s[8:11], 0 offen offset:16
""")
    e("s_waitcnt vmcnt(0)\nK2_END:")
    return e.text()

if __name__ == "__main__":
    import sys
    from asmlib import *
    txt = k2_body(instr=True, abl=tuple(sys.argv[1:]))
    open("k2only.s", "w").write(file_text([f"; @launch kernel=k2_kernel grid=(256,1,1) block=(512,1,1) lds={K2_LDS}"], [kernel_text("k2_kernel", txt, vgpr=120)]))
```

```python
from g2 import E, fbits, WS_ACT, ACT_LD, WS_BYTES
K3_SLOT = 16384
K3_LDS = 4 * K3_SLOT
NST = 36

def k3_body():
    e = E()
    ACC = 64; WF = 32; AF = 96
    vLane, vT0, vT1, vT2, vDW, vDA, vTR0, vTR1, vAA0, vAA1 = 1, 2, 3, 4, 5, 6, 7, 8, 9, 10
    def acc(mt, j): return ACC + (mt*2 + j)*4
    def wf(b, j): return WF + (b*2 + j)*4
    def af(b, mt): return AF + (b*2 + mt)*4
    e(f"""
s_cmp_ge_u32 s2, 256
s_cbranch_scc1 K3_END
s_load_dwordx2 s[4:5], s[0:1], 0         ; x
s_load_dwordx2 s[6:7], s[0:1], 16        ; wo
s_load_dwordx2 s[20:21], s[0:1], 48      ; w2
s_load_dwordx2 s[22:23], s[0:1], 56      ; b2
s_load_dwordx2 s[24:25], s[0:1], 64      ; out
s_load_dwordx2 s[26:27], s[0:1], 80      ; ws
s_and_b32 s28, s2, 31
s_lshr_b32 s29, s2, 5
v_lshrrev_b32 v{vT0}, 6, v0
v_and_b32 v{vLane}, 63, v0
v_readfirstlane_b32 s30, v{vT0}          ; wave
s_and_b32 s31, s30, 1                    ; wr
s_lshr_b32 s32, s30, 1                   ; wc
s_waitcnt lgkmcnt(0)
s_mov_b32 s8, s6
s_mov_b32 s9, s7
s_mov_b32 s10, 524288
s_mov_b32 s11, 0x00020000
s_add_u32 s12, s26, {WS_ACT}
s_addc_u32 s13, s27, 0
s_mov_b32 s14, {2048*ACT_LD}
s_mov_b32 s15, 0x00020000
v_lshrrev_b32 v{vT0}, 3, v{vLane}        ; lane>>3 (0..7)
v_lshrrev_b32 v{vT1}, 4, v{vLane}
v_and_b32 v{vT1}, 1, v{vT1}              ; (row>>1)&1
v_lshlrev_b32 v{vT1}, 1, v{vT1}          ; f2<<1 for i=0
v_and_b32 v{vT2}, 7, v{vLane}
v_xor_b32 v{vT1}, v{vT1}, v{vT2}         ; chunk (i=0)
s_lshl_b32 s33, s30, 4                   ; 16w
v_add_u32 v{vT0}, s33, v{vT0}
v_lshlrev_b32 v{vDW}, 10, v{vT0}
v_lshl_add_u32 v{vDW}, v{vT1}, 4, v{vDW}
s_lshl_b32 s34, s29, 7
v_lshrrev_b32 v{vT1}, 3, v{vLane}
v_and_b32 v{vT2}, 7, v{vLane}
v_xor_b32 v{vT2}, v{vT2}, v{vT1}
s_lshl_b32 s35, s28, 6
s_add_u32 s35, s35, s33
v_add_u32 v{vT1}, s35, v{vT1}
s_mov_b32 s36, {ACT_LD}
v_mul_lo_u32 v{vDA}, v{vT1}, s36
v_lshl_add_u32 v{vDA}, v{vT2}, 4, v{vDA}
s_lshl_b32 s37, s30, 11
v_lshrrev_b32 v{vT0}, 4, v{vLane}        ; g
v_and_b32 v{vT1}, 15, v{vLane}
v_lshrrev_b32 v{vT2}, 2, v{vT1}          ; r
v_and_b32 v{vT1}, 3, v{vT1}              ; c
v_lshl_add_u32 v{vTR0}, v{vT0}, 3, v{vT2}
v_lshlrev_b32 v{vTR0}, 7, v{vTR0}
v_lshl_add_u32 v{vTR0}, v{vT1}, 3, v{vTR0}
v_lshrrev_b32 v{vT2}, 1, v{vT2}
v_and_b32 v{vT0}, 1, v{vT0}
v_lshl_or_b32 v{vT2}, v{vT0}, 1, v{vT2}  ; f2
s_lshl_b32 s38, s32, 1
v_xor_b32 v{vT0}, s38, v{vT2}
v_lshlrev_b32 v{vT0}, 5, v{vT0}
v_add_u32 v{vTR1}, v{vTR0}, v{vT0}
v_xor_b32 v{vT0}, 32, v{vT0}
v_add_u32 v{vTR0}, v{vTR0}, v{vT0}
""")
    e(f"""
v_and_b32 v{vT0}, 15, v{vLane}
s_lshl_b32 s38, s31, 5
v_add_u32 v{vT0}, s38, v{vT0}
v_lshlrev_b32 v{vT0}, 7, v{vT0}
v_add_u32 v{vT0}, 8192, v{vT0}
v_lshrrev_b32 v{vT1}, 4, v{vLane}
v_and_b32 v{vT2}, 7, v{vLane}
v_xor_b32 v{vT1}, v{vT1}, v{vT2}
v_lshl_add_u32 v{vAA0}, v{vT1}, 4, v{vT0}
v_xor_b32 v{vAA1}, 64, v{vAA0}
""")
    for r in range(16):
        e(f"v_mov_b32 v{ACC+r}, 0")
    e("""
s_mov_b32 s40, 0
s_mov_b32 s41, 0
s_mov_b32 s42, 0
s_mov_b32 s43, 0
""")
    dma = f"""
s_cmp_eq_u32 s43, 8
s_cbranch_scc0 K3_NOSW_{{L}}
s_sub_u32 s8, s20, 524288
s_subb_u32 s9, s21, 0
s_mov_b32 s10, {{2304*1024}}
K3_NOSW_{{L}}:
s_add_u32 m0, s37, s42
s_add_u32 s44, s40, s34
buffer_load_dwordx4 v{vDW}, s[8:11], s44 offen lds
s_add_u32 m0, m0, 1024
s_add_u32 s44, s44, 8192
v_xor_b32 v{vT0}, 64, v{vDW}
s_nop 0
buffer_load_dwordx4 v{vT0}, s[8:11], s44 offen lds
s_add_u32 m0, s37, s42
s_add_u32 m0, m0, 8192
s_nop 0
buffer_load_dwordx4 v{vDA}, s[12:15], s41 offen lds
s_add_u32 m0, m0, 1024
s_add_u32 s44, s41, {8*ACT_LD}
buffer_load_dwordx4 v{vDA}, s[12:15], s44 offen lds
s_add_u32 s40, s40, 65536
s_add_u32 s41, s41, 128
s_add_u32 s42, s42, {K3_SLOT}
s_and_b32 s42, s42, {K3_LDS-1}
s_add_u32 s43, s43, 1
"""
    for i in range(3):
        e(dma.replace("{L}", f"P{i}").replace("{2304*1024}", str(2304*1024)))
    e(f"""
s_mov_b32 s45, 0
s_mov_b32 s46, 0
K3_LOOP:
s_cmp_ge_u32 s45, {NST-2}
s_cbranch_scc1 K3_W0
s_waitcnt vmcnt(8)
s_branch K3_W1
K3_W0:
s_waitcnt vmcnt(0)
K3_W1:
s_barrier
s_cmp_lt_u32 s43, {NST}
s_cbranch_scc0 K3_NODMA
{dma.replace("{L}", "M").replace("{2304*1024}", str(2304*1024))}
s_branch K3_AFTDMA
K3_NODMA:
K3_AFTDMA:
v_add_u32 v{vT0}, s46, v{vTR1}
v_add_u32 v{vT1}, s46, v{vTR0}
v_add_u32 v{vT2}, s46, v{vAA0}
v_add_u32 v11, s46, v{vAA1}
""")
    for kk in range(2):
        ko = kk*4096
        aa = vT2 if kk == 0 else 11
        for mt in range(2):
            e(f"ds_read_b128 v[{af(kk,mt)}:{af(kk,mt)+3}], v{aa} offset:{mt*2048}")
        for j, ra in enumerate((vT0, vT1)):
            e(f"ds_read_b64_tr_b16 v[{wf(kk,j)}:{wf(kk,j)+1}], v{ra} offset:{ko}")
            e(f"ds_read_b64_tr_b16 v[{wf(kk,j)+2}:{wf(kk,j)+3}], v{ra} offset:{ko+512}")
    for kk in range(2):
        e(f"s_waitcnt lgkmcnt({6 if kk==0 else 0})")
        for j in range(2):
            for mt in range(2):
                e(f"v_mfma_f32_16x16x32_bf16 v[{acc(mt,j)}:{acc(mt,j)+3}], v[{wf(kk,j)}:{wf(kk,j)+3}], v[{af(kk,mt)}:{af(kk,mt)+3}], v[{acc(mt,j)}:{acc(mt,j)+3}]")
    e(f"""
s_add_u32 s46, s46, {K3_SLOT}
s_and_b32 s46, s46, {K3_LDS-1}
s_add_u32 s45, s45, 1
s_cmp_lt_u32 s45, {NST}
s_cbranch_scc1 K3_LOOP
; epilogue
s_mov_b32 s8, s4
s_mov_b32 s9, s5
s_mov_b32 s10, 2097152
s_mov_b32 s12, s22
s_mov_b32 s13, s23
s_mov_b32 s14, 1024
s_mov_b32 s16, s24
s_mov_b32 s17, s25
s_mov_b32 s18, 2097152
s_mov_b32 s19, 0x00020000
v_lshrrev_b32 v{vT0}, 4, v{vLane}
v_lshlrev_b32 v{vT0}, 3, v{vT0}
s_lshl_b32 s38, s32, 6
s_add_u32 s38, s38, s34
v_add_u32 v{vT0}, s38, v{vT0}
v_and_b32 v{vT1}, 15, v{vLane}
s_lshl_b32 s39, s28, 6
s_lshl_b32 s44, s31, 5
s_add_u32 s39, s39, s44
v_add_u32 v{vT1}, s39, v{vT1}
v_lshl_add_u32 v{vT1}, v{vT1}, 10, v{vT0}
v_add_u32 v{vT2}, 16384, v{vT1}
""")
    B = WF
    for j in range(2):
        e(f"buffer_load_dwordx2 v[{B+2*j}:{B+2*j+1}], v{vT0}, s[12:15], 0 offen offset:{j*32}")
    for mt in range(2):
        for j in range(2):
            e(f"buffer_load_dwordx2 v[{B+4+(mt*2+j)*2}:{B+5+(mt*2+j)*2}], v{vT1 if mt==0 else vT2}, s[8:11], 0 offen offset:{j*32}")
    e("s_waitcnt vmcnt(0)\ns_nop 4")
    U = AF
    for mt in range(2):
        for j in range(2):
            a = acc(mt, j); xb = B+4+(mt*2+j)*2; bb = B+2*j
            e(f"""v_lshlrev_b32 v{U}, 16, v{xb}
v_and_b32 v{U+1}, 0xffff0000, v{xb}
v_lshlrev_b32 v{U+2}, 16, v{xb+1}
v_and_b32 v{U+3}, 0xffff0000, v{xb+1}
v_lshlrev_b32 v{U+4}, 16, v{bb}
v_and_b32 v{U+5}, 0xffff0000, v{bb}
v_lshlrev_b32 v{U+6}, 16, v{bb+1}
v_and_b32 v{U+7}, 0xffff0000, v{bb+1}""")
            for r in range(4):
                e(f"v_add_f32 v{a+r}, v{a+r}, v{U+4+r}\nv_add_f32 v{a+r}, v{a+r}, v{U+r}")
            e(f"""v_cvt_pk_bf16_f32 v{a}, v{a}, v{a+1}
v_cvt_pk_bf16_f32 v{a+1}, v{a+2}, v{a+3}
buffer_store_dwordx2 v[{a}:{a+1}], v{vT1 if mt==0 else vT2}, s[16:19], 0 offen offset:{j*32}""")
    e("s_waitcnt vmcnt(0)\nK3_END:")
    return e.text()
```

```python
import sys
sys.path.insert(0, "work")
from asmlib import kernel_text
import g1, g2, g3
HDR = open("parallel_sum__mha_block__dense_activation_gelu__prompt.s.ref").read().split("\n")
hdr = [l for l in HDR if l.startswith(";") and "@launch" not in l and "Override launch" not in l and "grid=ceil" not in l]
def build(path):
    lines = list(hdr)
    lines.append(f"; @launch kernel=mha_k1_kernel grid=(208,1,1) block=(512,1,1) lds={g1.K1_LDS}")
    lines.append(f"; @launch kernel=mha_k2_kernel grid=(256,1,1) block=(512,1,1) lds={g2.K2_LDS}")
    lines.append(f"; @launch kernel=mha_k3_kernel grid=(256,1,1) block=(256,1,1) lds={g3.K3_LDS}")
    s = "\n".join(lines) + '\n.amdgcn_target "amdgcn-amd-amdhsa--gfx950"\n'
    s += kernel_text("mha_k1_kernel", g1.k1_body(), vgpr=226)
    s += kernel_text("mha_k2_kernel", g2.k2_body(), vgpr=120)
    s += kernel_text("mha_k3_kernel", g3.k3_body(), vgpr=112)
    open(path, "w").write(s)
if __name__ == "__main__":
    build("parallel_sum__mha_block__dense_activation_gelu__prompt.s")
```

```python
from g2 import E, fbits, WS_BYTES
WS_XN = 0x1000000
def k0_body():
    e = E()
    e(f"""
s_cmp_ge_u32 s2, 256
s_cbranch_scc1 K0_END
s_load_dwordx2 s[4:5], s[0:1], 0
s_load_dwordx2 s[6:7], s[0:1], 80
v_lshrrev_b32 v10, 6, v0
v_and_b32 v11, 63, v0
s_lshl_b32 s3, s2, 3
v_add_u32 v10, s3, v10                    ; row
v_lshlrev_b32 v10, 10, v10
v_lshl_add_u32 v10, v11, 4, v10
s_waitcnt lgkmcnt(0)
s_mov_b32 s8, s4
s_mov_b32 s9, s5
s_mov_b32 s10, 2097152
s_mov_b32 s11, 0x00020000
s_add_u32 s12, s6, {WS_XN}
s_addc_u32 s13, s7, 0
s_mov_b32 s14, 2097152
s_mov_b32 s15, 0x00020000
buffer_load_dwordx4 v[0:3], v10, s[8:11], 0 offen
s_waitcnt vmcnt(0)
""")
    for q in range(4):
        e(f"v_lshlrev_b32 v{12+2*q}, 16, v{q}\nv_and_b32 v{13+2*q}, 0xffff0000, v{q}")
    e("v_add_f32 v20, v12, v13")
    for i in range(2, 8): e(f"v_add_f32 v20, v20, v{12+i}")
    def allreduce(r, t):
        s = ""
        for msk in (1, 2, 4, 8, 16):
            s += f"ds_swizzle_b32 v{t}, v{r} offset:{(msk<<10)|0x1f}\ns_waitcnt lgkmcnt(0)\nv_add_f32 v{r}, v{r}, v{t}\n"
        s += f"v_mov_b32 v{t}, v{r}\ns_nop 1\nv_permlane32_swap_b32 v{r}, v{t}\ns_nop 1\nv_add_f32 v{r}, v{r}, v{t}\n"
        return s
    e(allreduce(20, 21))
    e(f"v_mul_f32 v20, {fbits(1.0/512)}, v20")
    e("v_sub_f32 v22, v12, v20\nv_mul_f32 v23, v22, v22")
    for i in range(1, 8): e(f"v_sub_f32 v22, v{12+i}, v20\nv_fmac_f32 v23, v22, v22")
    e(allreduce(23, 21))
    e(f"""
v_mul_f32 v23, {fbits(1.0/512)}, v23
v_cvt_pk_bf16_f32 v21, v20, v20
v_lshlrev_b32 v20, 16, v21                ; m_bf
v_cvt_pk_bf16_f32 v21, v23, v23
v_lshlrev_b32 v23, 16, v21                ; v_bf
v_add_f32 v23, {fbits(1e-5)}, v23
v_cvt_pk_bf16_f32 v21, v23, v23
v_lshlrev_b32 v23, 16, v21
v_sqrt_f32 v23, v23
s_nop 0
v_cvt_pk_bf16_f32 v21, v23, v23
v_lshlrev_b32 v23, 16, v21                ; s_bf
v_rcp_f32 v23, v23
s_nop 0
""")
    for q in range(4):
        e(f"""v_sub_f32 v{12+2*q}, v{12+2*q}, v20
v_sub_f32 v{13+2*q}, v{13+2*q}, v20
v_cvt_pk_bf16_f32 v{q}, v{12+2*q}, v{13+2*q}
v_lshlrev_b32 v{12+2*q}, 16, v{q}
v_and_b32 v{13+2*q}, 0xffff0000, v{q}
v_mul_f32 v{12+2*q}, v{12+2*q}, v23
v_mul_f32 v{13+2*q}, v{13+2*q}, v23
v_cvt_pk_bf16_f32 v{q}, v{12+2*q}, v{13+2*q}""")
    e("buffer_store_dwordx4 v[0:3], v10, s[12:15], 0 offen\ns_waitcnt vmcnt(0)\nK0_END:")
    return e.text()
```

```python
import math
from g2 import E, fbits, WS_Q, WS_K, WS_V, WS_ACT, ACT_LD, WS_BYTES

SLOT = 49152
K1_LDS = 3 * SLOT
K1_THREADS = 512
QSCALE = 0.25 * math.log2(math.e)

def k1_body(instr=False, abl=()):
    NWR, NWC, MT, NT = 2, 4, 2, 2
    e = E()
    def stamp(i):
        return f's_memtime s[{50+2*i}:{51+2*i}]' if instr else ''
    vLane, vT0, vT1, vT2, vXD, vT3 = 1, 2, 3, 4, 5, 6
    vTR = 8
    vXA = 10
    vDW = 14
    vSum = 18; vSq = 20
    vCS = 22
    vU = 24
    vX0 = 40
    ACC = 48
    WF = 112
    XF = 128
    BIAS = 144
    CSV = 112
    NV = 160
    def acc(mt, j): return ACC + (mt*NT + j)*16
    def wf(b, j): return WF + (b*NT + j)*4
    def xf(b, mt): return XF + (b*MT + mt)*4

    def prologue_stats(R0, tmp):
        t = ""
        t += f"""v_lshlrev_b32 v{tmp}, 4, v{vLane}
s_lshl_b32 s44, s27, 7
s_add_u32 s44, s44, s28
s_lshl_b32 s44, s44, 10
"""
        for i in range(11):
            t += f"buffer_load_dwordx4 v[{R0+4*i}:{R0+4*i+3}], v{tmp}, s[8:11], s44 offen\ns_add_u32 s44, s44, 12288\n"
        return t
    def prologue_stats_compute(R0, A0, tmp):
        t = ""
        for i in range(11):
            sS, sQ = A0+2*i, A0+2*i+1
            first = True
            for q in range(4):
                r = R0+4*i+q
                t += f"v_lshlrev_b32 v{tmp+2*q}, 16, v{r}\nv_and_b32 v{tmp+2*q+1}, 0xffff0000, v{r}\n"
            t += f"v_add_f32 v{sS}, v{tmp}, v{tmp+1}\nv_mul_f32 v{sQ}, v{tmp}, v{tmp}\n"
            for q in range(1, 8):
                if q > 1: t += f"v_add_f32 v{sS}, v{sS}, v{tmp+q}\n"
                t += f"v_fmac_f32 v{sQ}, v{tmp+q}, v{tmp+q}\n"
        for msk in (1, 2, 4, 8, 16):
            for i in range(22):
                t += f"ds_swizzle_b32 v{R0+i}, v{A0+i} offset:{(msk<<10)|0x1f}\n"
            t += "s_waitcnt lgkmcnt(0)\n"
            for i in range(22):
                t += f"v_add_f32 v{A0+i}, v{A0+i}, v{R0+i}\n"
        for i in range(22): t += f"v_mov_b32 v{R0+i}, v{A0+i}\n"
        t += "s_nop 1\n"
        for i in range(22): t += f"v_permlane32_swap_b32 v{A0+i}, v{R0+i}\n"
        t += "s_nop 1\n"
        for i in range(22): t += f"v_add_f32 v{A0+i}, v{A0+i}, v{R0+i}\n"
        t += f"""s_lshl_b32 s44, s28, 3
s_add_u32 s44, s44, {3*SLOT}
v_mov_b32 v{tmp}, s44
v_cmp_eq_u32 vcc, 0, v{vLane}
s_and_saveexec_b64 s[42:43], vcc
"""
        for i in range(10):
            t += f"ds_write_b64 v{tmp}, v[{A0+2*i}:{A0+2*i+1}] offset:{i*96}\n"
        t += f"""s_cmp_ge_u32 s28, 8
s_cbranch_scc1 K1_PS_SKIP{{LBL}}
ds_write_b64 v{tmp}, v[{A0+20}:{A0+21}] offset:960
K1_PS_SKIP{{LBL}}:
s_mov_b64 exec, s[42:43]
"""
        return t
    e(f"""
s_cmp_ge_u32 s2, 208
s_cbranch_scc1 K1_END
s_load_dwordx2 s[4:5], s[0:1], 0
s_load_dwordx2 s[6:7], s[0:1], 8
s_load_dwordx2 s[20:21], s[0:1], 32
s_load_dwordx2 s[22:23], s[0:1], 40
s_load_dwordx2 s[24:25], s[0:1], 80
{stamp(0)}
s_lshr_b32 s26, s2, 4                    ; cg
s_and_b32 s27, s2, 15                    ; rb
v_lshrrev_b32 v{vT0}, 6, v0
v_and_b32 v{vLane}, 63, v0
v_readfirstlane_b32 s28, v{vT0}          ; wave
s_and_b32 s29, s28, 1                    ; wr
s_lshr_b32 s30, s28, 1                   ; wc
s_waitcnt lgkmcnt(0)
s_add_u32 s8, s24, 0x1000000
s_addc_u32 s9, s25, 0
s_mov_b32 s10, 2097152
s_mov_b32 s11, 0x00020000
s_mov_b32 s16, s24
s_mov_b32 s17, s25
s_mov_b32 s18, {WS_BYTES}
s_mov_b32 s19, 0x00020000
s_cmp_lt_u32 s26, 6
s_cselect_b32 s12, s6, s20
s_cselect_b32 s13, s7, s21
s_mov_b32 s31, 3584
s_cselect_b32 s31, 3072, s31
s_sub_u32 s32, s26, 6
s_cselect_b32 s32, s26, s32
s_lshl_b32 s32, s32, 9
s_lshl_b32 s14, s31, 9
s_mov_b32 s15, 0x00020000
v_lshrrev_b32 v{vT0}, 5, v{vLane}        ; p
s_lshl_b32 s34, s28, 3
v_and_b32 v{vT2}, 31, v{vLane}
""")
    for i in range(4):
        e(f"""v_add_u32 v{vT1}, {2*i}, v{vT0}
v_and_b32 v{vT3}, 3, v{vT1}
v_lshlrev_b32 v{vT3}, 2, v{vT3}
v_xor_b32 v{vT3}, v{vT3}, v{vT2}
v_lshlrev_b32 v{vT3}, 4, v{vT3}
v_add_u32 v{vT1}, s34, v{vT1}
v_mul_lo_u32 v{vDW+i}, v{vT1}, s31
v_add_u32 v{vDW+i}, v{vDW+i}, v{vT3}""")
    e(f"""
s_lshl_b32 s36, s31, 6
s_lshl_b32 s37, s28, 12
v_lshrrev_b32 v{vT0}, 3, v{vLane}
v_and_b32 v{vT1}, 7, v{vLane}
v_xor_b32 v{vT1}, v{vT1}, v{vT0}
s_lshl_b32 s33, s28, 1
s_and_b32 s33, s33, 3
v_xor_b32 v{vT1}, s33, v{vT1}            ; i=0
s_lshl_b32 s38, s27, 7
s_lshl_b32 s39, s28, 4
s_add_u32 s39, s39, s38
v_add_u32 v{vT0}, s39, v{vT0}
v_lshlrev_b32 v{vT0}, 10, v{vT0}
v_lshl_add_u32 v{vXD}, v{vT1}, 4, v{vT0}
s_lshl_b32 s39, s28, 11
s_add_u32 s39, s39, 32768
""")
    def dma_list(stage):
        slot = stage % 3
        L = []
        for i in range(4):
            L.append(f"""s_add_u32 m0, s37, {slot*SLOT + i*1024}
s_mul_i32 s40, s36, {stage}
s_add_u32 s40, s40, s32
buffer_load_dwordx4 v{vDW+i}, s[12:15], s40 offen lds""")
        L.append(f"""s_add_u32 m0, s39, {slot*SLOT}
s_mov_b32 s40, {stage*128}
buffer_load_dwordx4 v{vXD}, s[8:11], s40 offen lds""")
        L.append(f"""s_add_u32 m0, s39, {slot*SLOT + 1024}
s_mov_b32 s40, {stage*128 + 8192}
v_xor_b32 v{vT3}, 16, v{vXD}
buffer_load_dwordx4 v{vT3}, s[8:11], s40 offen lds""")
        return L
    NDMA = 6
    for st in (0, 1):
        for d in dma_list(st): e(d)
    e(f"""
v_lshrrev_b32 v{vT0}, 5, v{vLane}        ; khalf
v_and_b32 v{vT1}, 15, v{vLane}
v_lshrrev_b32 v{vT2}, 2, v{vT1}          ; r
v_lshl_add_u32 v{vT3}, v{vT0}, 3, v{vT2}
v_lshlrev_b32 v{vT3}, 9, v{vT3}
v_and_b32 v{vT1}, 3, v{vT1}
v_lshl_add_u32 v{vT3}, v{vT1}, 3, v{vT3}
v_lshrrev_b32 v{vT0}, 4, v{vLane}
v_and_b32 v{vT0}, 1, v{vT0}
v_lshl_add_u32 v{vT3}, v{vT0}, 5, v{vT3}
s_lshl_b32 s40, s30, 1
""")
    for j in range(NT):
        e(f"""s_add_u32 s41, s40, {j}
v_xor_b32 v{vT0}, s41, v{vT2}
v_lshl_add_u32 v{vTR+j}, v{vT0}, 6, v{vT3}""")
    e(f"""
v_and_b32 v{vT0}, 31, v{vLane}
s_lshl_b32 s40, s29, 6
v_add_u32 v{vT1}, s40, v{vT0}
v_lshlrev_b32 v{vT1}, 7, v{vT1}
v_add_u32 v{vT1}, 32768, v{vT1}
v_and_b32 v{vT2}, 7, v{vT0}
v_lshrrev_b32 v{vT0}, 3, v{vT0}
v_xor_b32 v{vT2}, v{vT2}, v{vT0}
v_lshrrev_b32 v{vT0}, 5, v{vLane}
v_xor_b32 v{vT2}, v{vT2}, v{vT0}
v_lshl_add_u32 v{vXA}, v{vT2}, 4, v{vT1}
v_xor_b32 v{vXA+1}, 32, v{vXA}
v_xor_b32 v{vXA+2}, 64, v{vXA}
v_xor_b32 v{vXA+3}, 96, v{vXA}
""")
    for r in range(64): e(f"v_mov_b32 v{ACC+r}, 0")
    e(f"""
s_mov_b32 s4, s22
s_mov_b32 s5, s23
s_mov_b32 s6, 3584
s_mov_b32 s7, 0x00020000
s_lshl_b32 s46, s30, 7
s_add_u32 s45, s32, s46
v_lshrrev_b32 v{vT0}, 5, v{vLane}
v_lshlrev_b32 v{vT0}, 3, v{vT0}
""")
    for j in range(NT):
        for q4 in range(4):
            e(f"buffer_load_dwordx2 v[{BIAS+(j*4+q4)*2}:{BIAS+(j*4+q4)*2+1}], v{vT0}, s[4:7], s45 offen offset:{j*64+q4*16}")
    def rd_list(n):
        kk = n & 3; b = n & 1
        L = []
        for j in range(NT):
            L.append(f"ds_read_b64_tr_b16 v[{wf(b,j)}:{wf(b,j)+1}], v{vTR+j} offset:{kk*8192}")
            L.append(f"ds_read_b64_tr_b16 v[{wf(b,j)+2}:{wf(b,j)+3}], v{vTR+j} offset:{kk*8192+2048}")
            L.append(f"ds_read_b128 v[{xf(b,j)}:{xf(b,j)+3}], v{vXA+kk} offset:{j*4096}")
        return L
    def adv_addr(st):
        d = SLOT if (st % 3) != 0 else -2*SLOT
        ds = d if d > 0 else hex(d & 0xffffffff)
        return "".join(f"v_add_u32 v{r}, {ds}, v{r}\n" for r in list(range(vTR, vTR+2)) + list(range(vXA, vXA+4)))
    def stats_ops(b):
        L1, L2 = [], []
        for mt in range(MT):
            for q in range(4):
                i = mt*4+q; s = xf(b,mt)+q
                L1 += [f"v_lshlrev_b32 v{vU+2*i}, 16, v{s}", f"v_and_b32 v{vU+2*i+1}, 0xffff0000, v{s}"]
                L2 += [f"v_add_f32 v{vSum+mt}, v{vSum+mt}, v{vU+2*i}", f"v_fmac_f32 v{vSq+mt}, v{vU+2*i}, v{vU+2*i}",
                       f"v_add_f32 v{vSum+mt}, v{vSum+mt}, v{vU+2*i+1}", f"v_fmac_f32 v{vSq+mt}, v{vU+2*i+1}, v{vU+2*i+1}"]
        return L1 + L2
    def cs_ops(b):
        L1, L2 = [], []
        for j in range(NT):
            for q in range(4):
                i = j*4+q; s = wf(b,j)+q
                L1 += [f"v_lshlrev_b32 v{vU+2*i}, 16, v{s}", f"v_and_b32 v{vU+2*i+1}, 0xffff0000, v{s}"]
                L2 += [f"v_add_f32 v{vCS+j}, v{vCS+j}, v{vU+2*i}", f"v_add_f32 v{vCS+j}, v{vCS+j}, v{vU+2*i+1}"]
        return L1 + L2
    e(f"s_waitcnt vmcnt({NDMA+8}) lgkmcnt(0)\ns_barrier")
    pend = dma_list(2)
    for x in rd_list(0): e(x)
    for n in range(32):
        st, kk = n >> 2, n & 3
        b = n & 1
        e("s_waitcnt lgkmcnt(0)")
        if kk == 3 and st < 7:
            e(f"s_waitcnt vmcnt({NDMA if st + 2 < 8 else 0})\ns_barrier")
            if st + 3 < 8: pend += dma_list(st + 3)
            e(adv_addr(st + 1))
        rl = rd_list(n + 1) if n + 1 < 32 else []
        so = stats_ops(b); co = cs_ops(b)
        i = 0
        for j in range(NT):
            for mt in range(MT):
                e(f"v_mfma_f32_32x32x16_bf16 v[{acc(mt,j)}:{acc(mt,j)+15}], v[{wf(b,j)}:{wf(b,j)+3}], v[{xf(b,mt)}:{xf(b,mt)+3}], v[{acc(mt,j)}:{acc(mt,j)+15}]")
                for _ in range(2):
                    if rl: e(rl.pop(0))
                if pend and i in (1, 3): e(pend.pop(0))
                i += 1
        for x in rl: e(x)
    for d in pend: e(d)
    e(stamp(1))
    e(f"""
v_and_b32 v{vT1}, 31, v{vLane}
s_lshl_b32 s40, s29, 6
s_add_u32 s38, s38, s40
v_add_u32 v{vT1}, s38, v{vT1}
v_lshrrev_b32 v{vT2}, 5, v{vLane}
""")
    e(stamp(2))
    e(f"""
s_cmp_ge_u32 s26, 6
s_cbranch_scc1 K1_EPI_H
s_cmp_lt_u32 s26, 2
s_cselect_b32 s44, {fbits(QSCALE)}, 1.0
s_lshr_b32 s45, s26, 1
s_lshl_b32 s45, s45, 21
s_and_b32 s46, s26, 1
s_lshl_b32 s46, s46, 4
s_lshl_b32 s47, s30, 2
s_add_u32 s46, s46, s47
s_lshl_b32 s46, s46, 16
s_add_u32 s45, s45, s46
s_cmp_lt_u32 s26, 4
s_cbranch_scc0 K1_EPI_V
v_lshlrev_b32 v{vX0}, 4, v{vT1}
v_lshl_add_u32 v{vX0}, v{vT2}, 3, v{vX0}
v_add_u32 v{vX0+1}, 512, v{vX0}
s_mov_b32 s47, 32768
s_branch K1_EPI_QKV
K1_EPI_V:
v_lshlrev_b32 v{vX0}, 5, v{vT1}
v_lshl_add_u32 v{vX0}, v{vT2}, 3, v{vX0}
v_add_u32 v{vX0+1}, 1024, v{vX0}
s_mov_b32 s47, 16
K1_EPI_QKV:
""")
    for j in range(NT):
        for q4 in range(4):
            e(f"s_add_u32 s46, s45, {(2*j+(q4>>1))*65536}")
            if q4 & 1: e("s_add_u32 s46, s46, s47")
            for mt in range(MT):
                a = acc(mt, j) + q4*4
                for r in range(4):
                    e(f"v_mul_f32 v{a+r}, s44, v{a+r}")
                e(f"""v_cvt_pk_bf16_f32 v{a}, v{a}, v{a+1}
v_cvt_pk_bf16_f32 v{a+1}, v{a+2}, v{a+3}
buffer_store_dwordx2 v[{a}:{a+1}], v{vX0+mt}, s[16:19], s46 offen""")
    e("s_branch K1_DONE")
    A_ = -2.0*0.7978845608028654*math.log2(math.e); B_ = A_*0.044715
    e(f"""
K1_EPI_H:
s_mov_b32 s46, {ACT_LD}
v_mul_lo_u32 v{vX0}, v{vT1}, s46
v_lshl_add_u32 v{vX0}, v{vT2}, 3, v{vX0}
v_add_u32 v{vX0+1}, {32*ACT_LD}, v{vX0}
s_add_u32 s47, s45, {WS_ACT + 1024}
v_mov_b32 v{vT3}, {fbits(A_)}
s_waitcnt vmcnt(0)
""")
    T = vU
    for j in range(NT):
        for q4 in range(4):
            bb = BIAS+(j*4+q4)*2
            e(f"""v_lshlrev_b32 v{T+8}, 16, v{bb}
v_and_b32 v{T+9}, 0xffff0000, v{bb}
v_lshlrev_b32 v{T+10}, 16, v{bb+1}
v_and_b32 v{T+11}, 0xffff0000, v{bb+1}""")
            for mt in range(MT):
                a = acc(mt, j) + q4*4
                tt = T + mt*4
                for r in range(4): e(f"v_add_f32 v{a+r}, v{a+r}, v{T+8+r}")
                for r in range(4): e(f"v_mul_f32 v{tt+r}, v{a+r}, v{a+r}")
                for r in range(4): e(f"v_fmamk_f32 v{tt+r}, v{tt+r}, {fbits(B_)}, v{vT3}")
                for r in range(4): e(f"v_mul_f32 v{tt+r}, v{tt+r}, v{a+r}")
                for r in range(4): e(f"v_exp_f32 v{tt+r}, v{tt+r}")
                for r in range(4): e(f"v_add_f32 v{tt+r}, 1.0, v{tt+r}")
                for r in range(4): e(f"v_rcp_f32 v{tt+r}, v{tt+r}")
                for r in range(4): e(f"v_mul_f32 v{a+r}, v{a+r}, v{tt+r}")
                e(f"""v_cvt_pk_bf16_f32 v{a}, v{a}, v{a+1}
v_cvt_pk_bf16_f32 v{a+1}, v{a+2}, v{a+3}
buffer_store_dwordx2 v[{a}:{a+1}], v{vX0+mt}, s[16:19], s47 offen offset:{j*64+q4*16}""")
    e("K1_DONE:")
    e(stamp(3))
    e("s_waitcnt vmcnt(0)")
    e(stamp(4))
    if instr:
        e(f"""s_waitcnt lgkmcnt(0)
s_lshl_b32 s48, s2, 3
s_add_u32 s48, s48, s28
s_lshl_b32 s48, s48, 6
s_add_u32 s48, s48, 0x2000000
v_mov_b32 v1, s48
""")
        for i in range(5):
            e(f"v_mov_b32 v{2+2*i}, s{50+2*i}\nv_mov_b32 v{3+2*i}, s{51+2*i}")
        e("""buffer_store_dwordx4 v[2:5], v1, s[16:19], 0 offen
buffer_store_dwordx4 v[6:9], v1, s[16:19], 0 offen offset:16
buffer_store_dwordx4 v[10:13], v1, s[16:19], 0 offen offset:32
s_waitcnt vmcnt(0)""")
    e("K1_END:")
    return e.text(), NV

if __name__ == "__main__":
    import sys
    from asmlib import *
    txt, nv = k1_body(instr=True, abl=tuple(sys.argv[1:]))
    import g0
    open(f"k1only.s", "w").write(file_text(["; @launch kernel=k0_kernel grid=(256,1,1) block=(512,1,1) lds=0", f"; @launch kernel=k1_kernel grid=(208,1,1) block=({K1_THREADS},1,1) lds={K1_LDS}"], [kernel_text("k0_kernel", g0.k0_body(), vgpr=32), kernel_text("k1_kernel", txt, vgpr=nv)]))
```

```python
import sys
sys.path.insert(0, "work")
from asmlib import kernel_text
import g0, g1, g2, g3
HDR = open("parallel_sum__mha_block__dense_activation_gelu__prompt.s.ref").read().split("\n")
hdr = [l for l in HDR if l.startswith(";") and "@launch" not in l and "Override launch" not in l and "grid=ceil" not in l]
def build(path):
    lines = list(hdr)
    lines.append(f"; @launch kernel=mha_k0_kernel grid=(256,1,1) block=(512,1,1) lds=0")
    lines.append(f"; @launch kernel=mha_k1_kernel grid=(208,1,1) block=({g1.K1_THREADS},1,1) lds={g1.K1_LDS}")
    lines.append(f"; @launch kernel=mha_k2_kernel grid=(256,1,1) block=(512,1,1) lds={g2.K2_LDS}")
    lines.append(f"; @launch kernel=mha_k3_kernel grid=(256,1,1) block=(256,1,1) lds={g3.K3_LDS}")
    s = "\n".join(lines) + '\n.amdgcn_target "amdgcn-amd-amdhsa--gfx950"\n'
    s += kernel_text("mha_k0_kernel", g0.k0_body(), vgpr=32)
    t1, nv1 = g1.k1_body()
    s += kernel_text("mha_k1_kernel", t1, vgpr=nv1)
    s += kernel_text("mha_k2_kernel", g2.k2_body(), vgpr=120)
    s += kernel_text("mha_k3_kernel", g3.k3_body(), vgpr=112)
    open(path, "w").write(s)
if __name__ == "__main__":
    build("parallel_sum__mha_block__dense_activation_gelu__prompt.s")
```

```python
from g2 import E, fbits, WS_ACT, ACT_LD, WS_BYTES
GB_SLOT = 16384
GB_LDS = 3 * GB_SLOT
WS_PART = 0x1400000

def gemmb(e, P, nst, a_off, a_ld, w_ptr_off, w_bytes, mode, sbase=40):
    vLane, vT0, vT1, vT2, vT3, vDW, vDA = 1, 2, 3, 4, 5, 6, 7
    vTR = 8; vXA = 9
    ACC = 16; WF = 32; XF = 40
    s = sbase
    e(f"""
s_load_dwordx2 s[{s+2}:{s+3}], s[0:1], {w_ptr_off}
s_load_dwordx2 s[{s+4}:{s+5}], s[0:1], 80
v_lshrrev_b32 v{vT0}, 6, v0
v_and_b32 v{vLane}, 63, v0
v_readfirstlane_b32 s{s+6}, v{vT0}       ; wave
s_cmp_ge_u32 s{s+6}, 4
s_cbranch_scc1 {P}_END
s_and_b32 s{s+7}, s{s+6}, 1              ; wr
s_lshr_b32 s{s+8}, s{s+6}, 1             ; wc
s_waitcnt lgkmcnt(0)
s_mov_b32 s8, s{s+2}
s_mov_b32 s9, s{s+3}
s_mov_b32 s10, {w_bytes}
s_mov_b32 s11, 0x00020000
s_add_u32 s12, s{s+4}, {WS_ACT}
s_addc_u32 s13, s{s+5}, 0
s_mov_b32 s14, {2048*ACT_LD}
s_mov_b32 s15, 0x00020000
v_lshrrev_b32 v{vT0}, 3, v{vLane}
v_lshrrev_b32 v{vT1}, 4, v{vLane}
v_and_b32 v{vT1}, 1, v{vT1}
v_lshlrev_b32 v{vT1}, 2, v{vT1}
v_and_b32 v{vT2}, 7, v{vLane}
v_xor_b32 v{vT1}, v{vT1}, v{vT2}
s_lshl_b32 s{s+9}, s{s+6}, 4
v_add_u32 v{vT0}, s{s+9}, v{vT0}
v_lshlrev_b32 v{vDW}, 10, v{vT0}
v_lshl_add_u32 v{vDW}, v{vT1}, 4, v{vDW}
s_lshl_b32 s{s+10}, s{s+1}, 7            ; cb*128
v_lshrrev_b32 v{vT1}, 3, v{vLane}
v_and_b32 v{vT2}, 7, v{vLane}
v_xor_b32 v{vT2}, v{vT2}, v{vT1}
s_lshl_b32 s{s+11}, s{s+6}, 1
s_and_b32 s{s+11}, s{s+11}, 3
v_xor_b32 v{vT2}, s{s+11}, v{vT2}
s_lshl_b32 s{s+11}, s{s}, 6
s_add_u32 s{s+11}, s{s+11}, s{s+9}
v_add_u32 v{vT1}, s{s+11}, v{vT1}
s_mov_b32 s{s+12}, {a_ld}
v_mul_lo_u32 v{vDA}, v{vT1}, s{s+12}
v_lshl_add_u32 v{vDA}, v{vT2}, 4, v{vDA}
s_lshl_b32 s{s+13}, s{s+6}, 11
v_lshrrev_b32 v{vT0}, 5, v{vLane}
v_and_b32 v{vT1}, 15, v{vLane}
v_lshrrev_b32 v{vT2}, 2, v{vT1}
v_lshl_add_u32 v{vT3}, v{vT0}, 3, v{vT2}
v_lshlrev_b32 v{vT3}, 7, v{vT3}
v_and_b32 v{vT1}, 3, v{vT1}
v_lshl_add_u32 v{vT3}, v{vT1}, 3, v{vT3}
v_lshrrev_b32 v{vT0}, 4, v{vLane}
v_and_b32 v{vT0}, 1, v{vT0}
v_lshl_add_u32 v{vT3}, v{vT0}, 5, v{vT3}
v_lshrrev_b32 v{vT2}, 1, v{vT2}
v_xor_b32 v{vT0}, s{s+8}, v{vT2}
v_lshl_add_u32 v{vTR}, v{vT0}, 6, v{vT3}
v_and_b32 v{vT0}, 31, v{vLane}
s_lshl_b32 s{s+14}, s{s+7}, 5
v_add_u32 v{vT1}, s{s+14}, v{vT0}
v_lshlrev_b32 v{vT1}, 7, v{vT1}
v_add_u32 v{vT1}, 8192, v{vT1}
v_and_b32 v{vT2}, 7, v{vT0}
v_lshrrev_b32 v{vT0}, 3, v{vT0}
v_xor_b32 v{vT2}, v{vT2}, v{vT0}
v_lshrrev_b32 v{vT0}, 5, v{vLane}
v_xor_b32 v{vT2}, v{vT2}, v{vT0}
v_lshl_add_u32 v{vXA}, v{vT2}, 4, v{vT1}
v_xor_b32 v{vXA+1}, 32, v{vXA}
v_xor_b32 v{vXA+2}, 64, v{vXA}
v_xor_b32 v{vXA+3}, 96, v{vXA}
""")
    for r in range(16): e(f"v_mov_b32 v{ACC+r}, 0")
    def dma_list(stage):
        slot = stage % 3
        return [f"""s_add_u32 m0, s{s+13}, {slot*GB_SLOT}
s_add_u32 s{s+15}, s{s+10}, {stage*65536}
buffer_load_dwordx4 v{vDW}, s[8:11], s{s+15} offen lds""",
f"""s_add_u32 m0, s{s+13}, {slot*GB_SLOT+1024}
s_add_u32 s{s+15}, s{s+10}, {stage*65536+8192}
buffer_load_dwordx4 v{vDW}, s[8:11], s{s+15} offen lds""",
f"""s_add_u32 m0, s{s+13}, {slot*GB_SLOT+8192}
s_mov_b32 s{s+15}, {a_off + stage*128}
buffer_load_dwordx4 v{vDA}, s[12:15], s{s+15} offen lds""",
f"""s_add_u32 m0, s{s+13}, {slot*GB_SLOT+8192+1024}
s_mov_b32 s{s+15}, {a_off + stage*128 + 8*a_ld}
v_xor_b32 v{vT3}, 16, v{vDA}
buffer_load_dwordx4 v{vT3}, s[12:15], s{s+15} offen lds"""]
    def rd_list(n):
        kk = n & 3; b = n & 1
        return [f"ds_read_b64_tr_b16 v[{WF+4*b}:{WF+4*b+1}], v{vTR} offset:{kk*2048}",
                f"ds_read_b64_tr_b16 v[{WF+4*b+2}:{WF+4*b+3}], v{vTR} offset:{kk*2048+512}",
                f"ds_read_b128 v[{XF+4*b}:{XF+4*b+3}], v{vXA+kk}"]
    def adv(st):
        d = GB_SLOT if (st % 3) != 0 else -2*GB_SLOT
        ds = d if d > 0 else hex(d & 0xffffffff)
        return "".join(f"v_add_u32 v{r}, {ds}, v{r}\n" for r in [vTR, vXA, vXA+1, vXA+2, vXA+3])
    for st in (0, 1):
        for d in dma_list(st): e(d)
    e("s_waitcnt vmcnt(4)\ns_barrier")
    pend = dma_list(2) if nst > 2 else []
    for x in rd_list(0): e(x)
    N = nst*4
    for n in range(N):
        st, kk = n >> 2, n & 3; b = n & 1
        e("s_waitcnt lgkmcnt(0)")
        if kk == 3 and st < nst-1:
            e(f"s_waitcnt vmcnt({4 if st + 2 < nst else 0})\ns_barrier")
            if st + 3 < nst: pend += dma_list(st + 3)
            e(adv(st + 1))
        for x in (rd_list(n+1) if n+1 < N else []): e(x)
        e(f"v_mfma_f32_32x32x16_bf16 v[{ACC}:{ACC+15}], v[{WF+4*b}:{WF+4*b+3}], v[{XF+4*b}:{XF+4*b+3}], v[{ACC}:{ACC+15}]")
        for _ in range(2):
            if pend: e(pend.pop(0))
    for d in pend: e(d)
    e(f"""
v_and_b32 v{vT1}, 31, v{vLane}
s_lshl_b32 s{s+14}, s{s}, 6
s_lshl_b32 s{s+15}, s{s+7}, 5
s_add_u32 s{s+14}, s{s+14}, s{s+15}
v_add_u32 v{vT1}, s{s+14}, v{vT1}        ; token
v_lshrrev_b32 v{vT2}, 5, v{vLane}        ; hf
s_lshl_b32 s{s+14}, s{s+1}, 6
s_lshl_b32 s{s+15}, s{s+8}, 5
s_add_u32 s{s+14}, s{s+14}, s{s+15}
v_lshlrev_b32 v{vT2}, 2, v{vT2}
v_add_u32 v{vT2}, s{s+14}, v{vT2}        ; col (q4=0)
""")
    if mode == 'part':
        e(f"""
s_load_dwordx2 s[{s+2}:{s+3}], s[0:1], 0
s_load_dwordx2 s[{s+16}:{s+17}], s[0:1], 56
s_waitcnt lgkmcnt(0)
s_mov_b32 s8, s{s+2}
s_mov_b32 s9, s{s+3}
s_mov_b32 s10, 2097152
s_mov_b32 s12, s{s+16}
s_mov_b32 s13, s{s+17}
s_mov_b32 s14, 1024
v_lshlrev_b32 v{vT0}, 1, v{vT2}
v_lshl_add_u32 v{vT3}, v{vT1}, 10, v{vT0}
""")
        for q4 in range(4):
            e(f"buffer_load_dwordx2 v[{WF+2*q4}:{WF+2*q4+1}], v{vT3}, s[8:11], 0 offen offset:{q4*16}")
            e(f"buffer_load_dwordx2 v[{XF+2*q4}:{XF+2*q4+1}], v{vT0}, s[12:15], 0 offen offset:{q4*16}")
        e(f"""
s_add_u32 s8, s{s+4}, {WS_PART}
s_addc_u32 s9, s{s+5}, 0
s_mov_b32 s10, 4194304
v_lshlrev_b32 v{vT0}, 2, v{vT2}
v_lshl_add_u32 v{vT0}, v{vT1}, 11, v{vT0}  ; part byte offset
s_waitcnt vmcnt(0)
s_nop 4
""")
        U = 48
        for q4 in range(4):
            a = ACC + 4*q4; xb = WF+2*q4; bb = XF+2*q4
            e(f"""v_lshlrev_b32 v{U}, 16, v{xb}
v_and_b32 v{U+1}, 0xffff0000, v{xb}
v_lshlrev_b32 v{U+2}, 16, v{xb+1}
v_and_b32 v{U+3}, 0xffff0000, v{xb+1}
v_lshlrev_b32 v{U+4}, 16, v{bb}
v_and_b32 v{U+5}, 0xffff0000, v{bb}
v_lshlrev_b32 v{U+6}, 16, v{bb+1}
v_and_b32 v{U+7}, 0xffff0000, v{bb+1}""")
            for r in range(4): e(f"v_add_f32 v{a+r}, v{a+r}, v{U+4+r}\nv_add_f32 v{a+r}, v{a+r}, v{U+r}")
            e(f"buffer_store_dwordx4 v[{a}:{a+3}], v{vT0}, s[8:11], 0 offen offset:{q4*32}")
        e("s_waitcnt vmcnt(0)")
    else:
        e(f"""
s_load_dwordx2 s[{s+2}:{s+3}], s[0:1], 64
s_add_u32 s8, s{s+4}, {WS_PART}
s_addc_u32 s9, s{s+5}, 0
s_mov_b32 s10, 4194304
v_lshlrev_b32 v{vT0}, 2, v{vT2}
v_lshl_add_u32 v{vT0}, v{vT1}, 11, v{vT0}
s_waitcnt lgkmcnt(0)
s_mov_b32 s12, s{s+2}
s_mov_b32 s13, s{s+3}
s_mov_b32 s14, 2097152
""")
        U = 48
        for q4 in range(4):
            e(f"buffer_load_dwordx4 v[{U+4*q4}:{U+4*q4+3}], v{vT0}, s[8:11], 0 offen offset:{q4*32}")
        e(f"""v_lshlrev_b32 v{vT0}, 1, v{vT2}
v_lshl_add_u32 v{vT0}, v{vT1}, 10, v{vT0}
s_waitcnt vmcnt(0)
s_nop 4""")
        for q4 in range(4):
            a = ACC + 4*q4
            for r in range(4): e(f"v_add_f32 v{a+r}, v{a+r}, v{U+4*q4+r}")
            e(f"""v_cvt_pk_bf16_f32 v{a}, v{a}, v{a+1}
v_cvt_pk_bf16_f32 v{a+1}, v{a+2}, v{a+3}
buffer_store_dwordx2 v[{a}:{a+1}], v{vT0}, s[12:15], 0 offen offset:{q4*16}""")
        e("s_waitcnt vmcnt(0)")
    e(f"{P}_END:")

def ffn2_kernel_body():
    e = E()
    e("s_cmp_ge_u32 s2, 256\ns_cbranch_scc1 F2_END\ns_and_b32 s40, s2, 31\ns_lshr_b32 s41, s2, 5")
    gemmb(e, "F2", 28, 1024, ACT_LD, 48, 1792*1024, 'part')
    return e.text()
def k3_body():
    e = E()
    e("s_cmp_ge_u32 s2, 256\ns_cbranch_scc1 K3_END\ns_and_b32 s40, s2, 31\ns_lshr_b32 s41, s2, 5")
    gemmb(e, "K3", 8, 0, ACT_LD, 16, 512*1024, 'final')
    return e.text()
```

```python
import sys
sys.path.insert(0, "work")
from asmlib import kernel_text
import g0, g1, g2, gb
HDR = open("parallel_sum__mha_block__dense_activation_gelu__prompt.s.ref").read().split("\n")
hdr = [l for l in HDR if l.startswith(";") and "@launch" not in l and "Override launch" not in l and "grid=ceil" not in l]
def build(path):
    lines = list(hdr)
    lines.append(f"; @launch kernel=mha_k0_kernel grid=(256,1,1) block=(512,1,1) lds=0")
    lines.append(f"; @launch kernel=mha_k1_kernel grid=(208,1,1) block=({g1.K1_THREADS},1,1) lds={g1.K1_LDS}")
    lines.append(f"; @launch kernel=mha_k2_kernel grid=(512,1,1) block=(512,1,1) lds={g2.K2_LDS}")
    lines.append(f"; @launch kernel=mha_k3_kernel grid=(256,1,1) block=(256,1,1) lds={gb.GB_LDS}")
    s = "\n".join(lines) + '\n.amdgcn_target "amdgcn-amd-amdhsa--gfx950"\n'
    s += kernel_text("mha_k0_kernel", g0.k0_body(), vgpr=32)
    t1, nv1 = g1.k1_body()
    s += kernel_text("mha_k1_kernel", t1, vgpr=nv1)
    e = g2.E()
    e("s_cmp_ge_u32 s2, 512\ns_cbranch_scc1 K2_END\ns_cmp_lt_u32 s2, 256\ns_cbranch_scc1 K2_ATT\ns_and_b32 s40, s2, 31\ns_lshr_b32 s41, s2, 5\ns_and_b32 s41, s41, 7\ns_setprio 3")
    gb.gemmb(e, "F2", 28, 1024, gb.ACT_LD, 48, 1792*1024, 'part')
    e("s_branch K2_END\nK2_ATT:")
    s += kernel_text("mha_k2_kernel", e.text() + "\n" + g2.k2_body(nwg=512), vgpr=120)
    s += kernel_text("mha_k3_kernel", gb.k3_body(), vgpr=64)
    open(path, "w").write(s)
if __name__ == "__main__":
    build("parallel_sum__mha_block__dense_activation_gelu__prompt.s")
```

```python
import math
from g2 import E, fbits, WS_Q, WS_K, WS_V, WS_ACT, ACT_LD, WS_BYTES

SLOT = 49152
K1_LDS = 3 * SLOT
K1_THREADS = 512
QSCALE = 0.25 * math.log2(math.e)

def k1_body(instr=False, abl=()):
    NWR, NWC, MT, NT = 2, 4, 2, 2
    e = E()
    def stamp(i):
        return f's_memtime s[{50+2*i}:{51+2*i}]' if instr else ''
    vLane, vT0, vT1, vT2, vXD, vT3 = 1, 2, 3, 4, 5, 6
    vTR = 8
    vXA = 10
    vDW = 14
    vSum = 18; vSq = 20
    vCS = 22
    vU = 24
    vX0 = 40
    ACC = 48
    WF = 112
    XF = 128
    BIAS = 144
    CSV = 112
    NV = 160
    def acc(mt, j): return ACC + (mt*NT + j)*16
    def wf(b, j): return WF + (b*NT + j)*4
    def xf(b, mt): return XF + (b*MT + mt)*4

    def prologue_stats(R0, tmp):
        t = ""
        t += f"""v_lshlrev_b32 v{tmp}, 4, v{vLane}
s_lshl_b32 s44, s27, 7
s_add_u32 s44, s44, s28
s_lshl_b32 s44, s44, 10
"""
        for i in range(11):
            t += f"buffer_load_dwordx4 v[{R0+4*i}:{R0+4*i+3}], v{tmp}, s[8:11], s44 offen\ns_add_u32 s44, s44, 12288\n"
        return t
    def prologue_stats_compute(R0, A0, tmp):
        t = ""
        for i in range(11):
            sS, sQ = A0+2*i, A0+2*i+1
            first = True
            for q in range(4):
                r = R0+4*i+q
                t += f"v_lshlrev_b32 v{tmp+2*q}, 16, v{r}\nv_and_b32 v{tmp+2*q+1}, 0xffff0000, v{r}\n"
            t += f"v_add_f32 v{sS}, v{tmp}, v{tmp+1}\nv_mul_f32 v{sQ}, v{tmp}, v{tmp}\n"
            for q in range(1, 8):
                if q > 1: t += f"v_add_f32 v{sS}, v{sS}, v{tmp+q}\n"
                t += f"v_fmac_f32 v{sQ}, v{tmp+q}, v{tmp+q}\n"
        for msk in (1, 2, 4, 8, 16):
            for i in range(22):
                t += f"ds_swizzle_b32 v{R0+i}, v{A0+i} offset:{(msk<<10)|0x1f}\n"
            t += "s_waitcnt lgkmcnt(0)\n"
            for i in range(22):
                t += f"v_add_f32 v{A0+i}, v{A0+i}, v{R0+i}\n"
        for i in range(22): t += f"v_mov_b32 v{R0+i}, v{A0+i}\n"
        t += "s_nop 1\n"
        for i in range(22): t += f"v_permlane32_swap_b32 v{A0+i}, v{R0+i}\n"
        t += "s_nop 1\n"
        for i in range(22): t += f"v_add_f32 v{A0+i}, v{A0+i}, v{R0+i}\n"
        t += f"""s_lshl_b32 s44, s28, 3
s_add_u32 s44, s44, {3*SLOT}
v_mov_b32 v{tmp}, s44
v_cmp_eq_u32 vcc, 0, v{vLane}
s_and_saveexec_b64 s[42:43], vcc
"""
        for i in range(10):
            t += f"ds_write_b64 v{tmp}, v[{A0+2*i}:{A0+2*i+1}] offset:{i*96}\n"
        t += f"""s_cmp_ge_u32 s28, 8
s_cbranch_scc1 K1_PS_SKIP{{LBL}}
ds_write_b64 v{tmp}, v[{A0+20}:{A0+21}] offset:960
K1_PS_SKIP{{LBL}}:
s_mov_b64 exec, s[42:43]
"""
        return t
    e(f"""
s_cmp_ge_u32 s2, 208
s_cbranch_scc1 K1_END
s_load_dwordx2 s[4:5], s[0:1], 0
s_load_dwordx2 s[6:7], s[0:1], 8
s_load_dwordx2 s[20:21], s[0:1], 32
s_load_dwordx2 s[22:23], s[0:1], 40
s_load_dwordx2 s[24:25], s[0:1], 80
{stamp(0)}
s_lshr_b32 s26, s2, 4                    ; cg
s_and_b32 s27, s2, 15                    ; rb
v_lshrrev_b32 v{vT0}, 6, v0
v_and_b32 v{vLane}, 63, v0
v_readfirstlane_b32 s28, v{vT0}          ; wave
s_and_b32 s29, s28, 1                    ; wr
s_lshr_b32 s30, s28, 1                   ; wc
s_waitcnt lgkmcnt(0)
s_add_u32 s8, s24, 0x1000000
s_addc_u32 s9, s25, 0
s_mov_b32 s10, 2097152
s_mov_b32 s11, 0x00020000
s_mov_b32 s16, s24
s_mov_b32 s17, s25
s_mov_b32 s18, {WS_BYTES}
s_mov_b32 s19, 0x00020000
s_cmp_lt_u32 s26, 6
s_cselect_b32 s12, s6, s20
s_cselect_b32 s13, s7, s21
s_mov_b32 s31, 3584
s_cselect_b32 s31, 3072, s31
s_sub_u32 s32, s26, 6
s_cselect_b32 s32, s26, s32
s_lshl_b32 s32, s32, 9
s_lshl_b32 s14, s31, 9
s_mov_b32 s15, 0x00020000
v_lshrrev_b32 v{vT0}, 5, v{vLane}        ; p
s_lshl_b32 s34, s28, 3
v_and_b32 v{vT2}, 31, v{vLane}
""")
    for i in range(4):
        e(f"""v_add_u32 v{vT1}, {2*i}, v{vT0}
v_and_b32 v{vT3}, 3, v{vT1}
v_lshlrev_b32 v{vT3}, 2, v{vT3}
v_xor_b32 v{vT3}, v{vT3}, v{vT2}
v_lshlrev_b32 v{vT3}, 4, v{vT3}
v_add_u32 v{vT1}, s34, v{vT1}
v_mul_lo_u32 v{vDW+i}, v{vT1}, s31
v_add_u32 v{vDW+i}, v{vDW+i}, v{vT3}""")
    e(f"""
s_lshl_b32 s36, s31, 6
s_lshl_b32 s37, s28, 12
v_lshrrev_b32 v{vT0}, 3, v{vLane}
v_and_b32 v{vT1}, 7, v{vLane}
v_xor_b32 v{vT1}, v{vT1}, v{vT0}
s_lshl_b32 s33, s28, 1
s_and_b32 s33, s33, 3
v_xor_b32 v{vT1}, s33, v{vT1}            ; i=0
s_lshl_b32 s38, s27, 7
s_lshl_b32 s39, s28, 4
s_add_u32 s39, s39, s38
v_add_u32 v{vT0}, s39, v{vT0}
v_lshlrev_b32 v{vT0}, 10, v{vT0}
v_lshl_add_u32 v{vXD}, v{vT1}, 4, v{vT0}
s_lshl_b32 s39, s28, 11
s_add_u32 s39, s39, 32768
""")
    def dma_list(stage):
        slot = stage % 3
        L = []
        for i in range(4):
            L.append(f"""s_add_u32 m0, s37, {slot*SLOT + i*1024}
s_mul_i32 s40, s36, {stage}
s_add_u32 s40, s40, s32
buffer_load_dwordx4 v{vDW+i}, s[12:15], s40 offen lds""")
        L.append(f"""s_add_u32 m0, s39, {slot*SLOT}
s_mov_b32 s40, {stage*128}
buffer_load_dwordx4 v{vXD}, s[8:11], s40 offen lds""")
        L.append(f"""s_add_u32 m0, s39, {slot*SLOT + 1024}
s_mov_b32 s40, {stage*128 + 8192}
v_xor_b32 v{vT3}, 16, v{vXD}
buffer_load_dwordx4 v{vT3}, s[8:11], s40 offen lds""")
        return L
    NDMA = 6
    for st in (0, 1):
        for d in dma_list(st): e(d)
    e(f"""
v_lshrrev_b32 v{vT0}, 5, v{vLane}        ; khalf
v_and_b32 v{vT1}, 15, v{vLane}
v_lshrrev_b32 v{vT2}, 2, v{vT1}          ; r
v_lshl_add_u32 v{vT3}, v{vT0}, 3, v{vT2}
v_lshlrev_b32 v{vT3}, 9, v{vT3}
v_and_b32 v{vT1}, 3, v{vT1}
v_lshl_add_u32 v{vT3}, v{vT1}, 3, v{vT3}
v_lshrrev_b32 v{vT0}, 4, v{vLane}
v_and_b32 v{vT0}, 1, v{vT0}
v_lshl_add_u32 v{vT3}, v{vT0}, 5, v{vT3}
s_lshl_b32 s40, s30, 1
""")
    for j in range(NT):
        e(f"""s_add_u32 s41, s40, {j}
v_xor_b32 v{vT0}, s41, v{vT2}
v_lshl_add_u32 v{vTR+j}, v{vT0}, 6, v{vT3}""")
    e(f"""
v_and_b32 v{vT0}, 31, v{vLane}
s_lshl_b32 s40, s29, 6
v_add_u32 v{vT1}, s40, v{vT0}
v_lshlrev_b32 v{vT1}, 7, v{vT1}
v_add_u32 v{vT1}, 32768, v{vT1}
v_and_b32 v{vT2}, 7, v{vT0}
v_lshrrev_b32 v{vT0}, 3, v{vT0}
v_xor_b32 v{vT2}, v{vT2}, v{vT0}
v_lshrrev_b32 v{vT0}, 5, v{vLane}
v_xor_b32 v{vT2}, v{vT2}, v{vT0}
v_lshl_add_u32 v{vXA}, v{vT2}, 4, v{vT1}
v_xor_b32 v{vXA+1}, 32, v{vXA}
v_xor_b32 v{vXA+2}, 64, v{vXA}
v_xor_b32 v{vXA+3}, 96, v{vXA}
""")
    for r in range(64): e(f"v_mov_b32 v{ACC+r}, 0")
    e(f"""
s_mov_b32 s4, s22
s_mov_b32 s5, s23
s_mov_b32 s6, 3584
s_mov_b32 s7, 0x00020000
s_lshl_b32 s46, s30, 7
s_add_u32 s45, s32, s46
v_lshrrev_b32 v{vT0}, 5, v{vLane}
v_lshlrev_b32 v{vT0}, 3, v{vT0}
""")
    for j in range(NT):
        for q4 in range(4):
            e(f"buffer_load_dwordx2 v[{BIAS+(j*4+q4)*2}:{BIAS+(j*4+q4)*2+1}], v{vT0}, s[4:7], s45 offen offset:{j*64+q4*16}")
    def rd_list(n):
        kk = n & 3; b = n & 1
        L = []
        for j in range(NT):
            L.append(f"ds_read_b64_tr_b16 v[{wf(b,j)}:{wf(b,j)+1}], v{vTR+j} offset:{kk*8192}")
            L.append(f"ds_read_b64_tr_b16 v[{wf(b,j)+2}:{wf(b,j)+3}], v{vTR+j} offset:{kk*8192+2048}")
            L.append(f"ds_read_b128 v[{xf(b,j)}:{xf(b,j)+3}], v{vXA+kk} offset:{j*4096}")
        return L
    def adv_addr(st):
        d = SLOT if (st % 3) != 0 else -2*SLOT
        ds = d if d > 0 else hex(d & 0xffffffff)
        return "".join(f"v_add_u32 v{r}, {ds}, v{r}\n" for r in list(range(vTR, vTR+2)) + list(range(vXA, vXA+4)))
    def stats_ops(b):
        L1, L2 = [], []
        for mt in range(MT):
            for q in range(4):
                i = mt*4+q; s = xf(b,mt)+q
                L1 += [f"v_lshlrev_b32 v{vU+2*i}, 16, v{s}", f"v_and_b32 v{vU+2*i+1}, 0xffff0000, v{s}"]
                L2 += [f"v_add_f32 v{vSum+mt}, v{vSum+mt}, v{vU+2*i}", f"v_fmac_f32 v{vSq+mt}, v{vU+2*i}, v{vU+2*i}",
                       f"v_add_f32 v{vSum+mt}, v{vSum+mt}, v{vU+2*i+1}", f"v_fmac_f32 v{vSq+mt}, v{vU+2*i+1}, v{vU+2*i+1}"]
        return L1 + L2
    def cs_ops(b):
        L1, L2 = [], []
        for j in range(NT):
            for q in range(4):
                i = j*4+q; s = wf(b,j)+q
                L1 += [f"v_lshlrev_b32 v{vU+2*i}, 16, v{s}", f"v_and_b32 v{vU+2*i+1}, 0xffff0000, v{s}"]
                L2 += [f"v_add_f32 v{vCS+j}, v{vCS+j}, v{vU+2*i}", f"v_add_f32 v{vCS+j}, v{vCS+j}, v{vU+2*i+1}"]
        return L1 + L2
    e(f"s_waitcnt vmcnt({NDMA+8}) lgkmcnt(0)\ns_barrier")
    pend = dma_list(2)
    for x in rd_list(0): e(x)
    for n in range(32):
        st, kk = n >> 2, n & 3
        b = n & 1
        e("s_waitcnt lgkmcnt(0)")
        if kk == 3 and st < 7:
            e(f"s_waitcnt vmcnt({NDMA if st + 2 < 8 else 0})\ns_barrier")
            if st + 3 < 8: pend += dma_list(st + 3)
            e(adv_addr(st + 1))
        rl = rd_list(n + 1) if n + 1 < 32 else []
        so = stats_ops(b); co = cs_ops(b)
        i = 0
        for j in range(NT):
            for mt in range(MT):
                e(f"v_mfma_f32_32x32x16_bf16 v[{acc(mt,j)}:{acc(mt,j)+15}], v[{wf(b,j)}:{wf(b,j)+3}], v[{xf(b,mt)}:{xf(b,mt)+3}], v[{acc(mt,j)}:{acc(mt,j)+15}]")
                for _ in range(2):
                    if rl: e(rl.pop(0))
                if pend and i in (1, 3): e(pend.pop(0))
                i += 1
        for x in rl: e(x)
    for d in pend: e(d)
    e(stamp(1))
    e(f"""
v_and_b32 v{vT1}, 31, v{vLane}
s_lshl_b32 s40, s29, 6
s_add_u32 s38, s38, s40
v_add_u32 v{vT1}, s38, v{vT1}
v_lshrrev_b32 v{vT2}, 5, v{vLane}
""")
    e(stamp(2))
    e(f"""
s_cmp_ge_u32 s26, 6
s_cbranch_scc1 K1_EPI_H
s_cmp_lt_u32 s26, 2
s_cselect_b32 s44, {fbits(QSCALE)}, 1.0
s_lshr_b32 s45, s26, 1
s_lshl_b32 s45, s45, 21
s_and_b32 s46, s26, 1
s_lshl_b32 s46, s46, 4
s_lshl_b32 s47, s30, 2
s_add_u32 s46, s46, s47
s_lshl_b32 s46, s46, 16
s_add_u32 s45, s45, s46
s_cmp_lt_u32 s26, 4
s_cbranch_scc0 K1_EPI_V
v_lshlrev_b32 v{vX0}, 4, v{vT1}
v_lshl_add_u32 v{vX0}, v{vT2}, 3, v{vX0}
v_add_u32 v{vX0+1}, 512, v{vX0}
s_mov_b32 s47, 32768
s_branch K1_EPI_QKV
K1_EPI_V:
v_lshlrev_b32 v{vX0}, 5, v{vT1}
v_lshl_add_u32 v{vX0}, v{vT2}, 3, v{vX0}
v_add_u32 v{vX0+1}, 1024, v{vX0}
s_mov_b32 s47, 16
K1_EPI_QKV:
""")
    e(f"""v_mov_b32 v{vT0}, s47
v_mul_lo_u32 v{vT0}, v{vT0}, v{vT2}
v_lshlrev_b32 v{vT3}, 3, v{vT2}
v_sub_u32 v{vT0}, v{vT0}, v{vT3}
v_add_u32 v{vX0}, v{vX0}, v{vT0}
v_add_u32 v{vX0+1}, v{vX0+1}, v{vT0}""")
    for j in range(NT):
        for i2 in range(2):
            e(f"s_add_u32 s46, s45, {(2*j+i2)*65536}")
            for mt in range(MT):
                a = acc(mt, j) + i2*8
                for r in range(8):
                    e(f"v_mul_f32 v{a+r}, s44, v{a+r}")
                e(f"""v_cvt_pk_bf16_f32 v{a}, v{a}, v{a+1}
v_cvt_pk_bf16_f32 v{a+1}, v{a+2}, v{a+3}
v_cvt_pk_bf16_f32 v{a+2}, v{a+4}, v{a+5}
v_cvt_pk_bf16_f32 v{a+3}, v{a+6}, v{a+7}
s_nop 1
v_permlane32_swap_b32 v{a}, v{a+2}
v_permlane32_swap_b32 v{a+1}, v{a+3}
s_nop 0
buffer_store_dwordx4 v[{a}:{a+3}], v{vX0+mt}, s[16:19], s46 offen""")
    e("s_branch K1_DONE")
    A_ = -2.0*0.7978845608028654*math.log2(math.e); B_ = A_*0.044715
    e(f"""
K1_EPI_H:
s_mov_b32 s46, {ACT_LD}
v_mul_lo_u32 v{vX0}, v{vT1}, s46
v_lshl_add_u32 v{vX0}, v{vT2}, 3, v{vX0}
v_add_u32 v{vX0+1}, {32*ACT_LD}, v{vX0}
s_add_u32 s47, s45, {WS_ACT + 1024}
v_mov_b32 v{vT3}, {fbits(A_)}
s_waitcnt vmcnt(0)
""")
    T = vU
    e(f"v_add_u32 v{vX0}, v{vT1}, v{vX0}" if False else "s_nop 0")
    e(f"v_lshlrev_b32 v{vT0}, 3, v{vT2}\nv_add_u32 v{vX0}, v{vX0}, v{vT0}\nv_add_u32 v{vX0+1}, v{vX0+1}, v{vT0}")
    for j in range(NT):
        for q4 in range(4):
            bb = BIAS+(j*4+q4)*2
            e(f"""v_lshlrev_b32 v{T+8}, 16, v{bb}
v_and_b32 v{T+9}, 0xffff0000, v{bb}
v_lshlrev_b32 v{T+10}, 16, v{bb+1}
v_and_b32 v{T+11}, 0xffff0000, v{bb+1}""")
            for mt in range(MT):
                a = acc(mt, j) + q4*4
                tt = T + mt*4
                for r in range(4): e(f"v_add_f32 v{a+r}, v{a+r}, v{T+8+r}")
                for r in range(4): e(f"v_mul_f32 v{tt+r}, v{a+r}, v{a+r}")
                for r in range(4): e(f"v_fmamk_f32 v{tt+r}, v{tt+r}, {fbits(B_)}, v{vT3}")
                for r in range(4): e(f"v_mul_f32 v{tt+r}, v{tt+r}, v{a+r}")
                for r in range(4): e(f"v_exp_f32 v{tt+r}, v{tt+r}")
                for r in range(4): e(f"v_add_f32 v{tt+r}, 1.0, v{tt+r}")
                for r in range(4): e(f"v_rcp_f32 v{tt+r}, v{tt+r}")
                for r in range(4): e(f"v_mul_f32 v{a+r}, v{a+r}, v{tt+r}")
                b0 = acc(mt, j) + (q4>>1)*8
                o = (q4 & 1)*2
                e(f"""v_cvt_pk_bf16_f32 v{T+12+mt*2}, v{a}, v{a+1}
v_cvt_pk_bf16_f32 v{T+13+mt*2}, v{a+2}, v{a+3}
v_mov_b32 v{b0+o}, v{T+12+mt*2}
v_mov_b32 v{b0+o+1}, v{T+13+mt*2}""")
                if q4 & 1:
                    e(f"""s_nop 1
v_permlane32_swap_b32 v{b0}, v{b0+2}
v_permlane32_swap_b32 v{b0+1}, v{b0+3}
s_nop 0
buffer_store_dwordx4 v[{b0}:{b0+3}], v{vX0+mt}, s[16:19], s47 offen offset:{j*64+(q4>>1)*32}""")
    e("K1_DONE:")
    e(stamp(3))
    e("s_waitcnt vmcnt(0)")
    e(stamp(4))
    if instr:
        e(f"""s_waitcnt lgkmcnt(0)
s_lshl_b32 s48, s2, 3
s_add_u32 s48, s48, s28
s_lshl_b32 s48, s48, 6
s_add_u32 s48, s48, 0x2000000
v_mov_b32 v1, s48
""")
        for i in range(5):
            e(f"v_mov_b32 v{2+2*i}, s{50+2*i}\nv_mov_b32 v{3+2*i}, s{51+2*i}")
        e("""buffer_store_dwordx4 v[2:5], v1, s[16:19], 0 offen
buffer_store_dwordx4 v[6:9], v1, s[16:19], 0 offen offset:16
buffer_store_dwordx4 v[10:13], v1, s[16:19], 0 offen offset:32
s_waitcnt vmcnt(0)""")
    e("K1_END:")
    return e.text(), NV

if __name__ == "__main__":
    import sys
    from asmlib import *
    txt, nv = k1_body(instr=True, abl=tuple(sys.argv[1:]))
    import g0
    open(f"k1only.s", "w").write(file_text(["; @launch kernel=k0_kernel grid=(256,1,1) block=(512,1,1) lds=0", f"; @launch kernel=k1_kernel grid=(208,1,1) block=({K1_THREADS},1,1) lds={K1_LDS}"], [kernel_text("k0_kernel", g0.k0_body(), vgpr=32), kernel_text("k1_kernel", txt, vgpr=nv)]))
```

```python
import struct
WS_Q = 0x000000; WS_K = 0x200000; WS_V = 0x400000; WS_ACT = 0x600000
ACT_LD = 4608
WS_BYTES = 268435456

def fbits(f):
    return "0x%08x" % struct.unpack("<I", struct.pack("<f", f))[0]

class E:
    def __init__(s): s.l = []
    def __call__(s, t):
        for x in t.strip("\n").split("\n"):
            s.l.append(x)
    def text(s): return "\n".join(s.l)

K2_LDS = 65536 + 8704

def k2_body(instr=False, abl=(), nwg=256):
    e = E()
    S = [16, 32]; NEGM = 48; O = 64; PB = 80; QF = 88; KF = 92; VF = 96; OS = 104
    vT0, vT1, vMx, vKa, vKn, vVa, vVn, vLK, vLV, vMsk, vClamp, vD, vF, vL16 = 1, 2, 3, 4, 5, 6, 7, 8, 9, 10, 11, 12, 13, 14
    CONST = 65536
    THR = 65536.0
    e(f"""
s_cmp_ge_u32 s2, {nwg}
s_cbranch_scc1 K2_END
s_load_dwordx2 s[4:5], s[0:1], 80
{"s_memtime s[40:41]" if instr else ""}
{"s_memrealtime s[42:43]" if instr else ""}
v_lshrrev_b32 v{vT0}, 6, v0
s_nop 0
v_readfirstlane_b32 s12, v{vT0}
s_and_b32 s13, s2, 31                    ; head
s_lshr_b32 s14, s2, 5
v_and_b32 v{vT1}, 63, v0                 ; lane
v_and_b32 v{vMx}, 5, v0
v_cmp_eq_u32 vcc, 0, v{vMx}
v_mov_b32 v{vD}, 0
v_mov_b32 v{vF}, 0x3f80
s_nop 1
v_cndmask_b32 v{vD}, v{vD}, v{vF}, vcc
v_lshlrev_b32 v{vF}, 2, v0
v_add_u32 v{vF}, {CONST}, v{vF}
ds_write_b32 v{vF}, v{vD}
ds_write_b32 v{vF}, v{vD} offset:2048
ds_write_b32 v{vF}, v{vD} offset:4096
ds_write_b32 v{vF}, v{vD} offset:6144
v_cmp_gt_u32 vcc, 128, v0
s_and_saveexec_b64 s[20:21], vcc
ds_write_b32 v{vF}, v{vD} offset:8192
s_mov_b64 exec, s[20:21]
s_waitcnt lgkmcnt(0)
s_mov_b32 s8, s4
s_mov_b32 s9, s5
s_mov_b32 s10, {WS_BYTES}
s_mov_b32 s11, 0x00020000
s_lshl_b32 s15, s13, 16                  ; head*65536
s_lshr_b32 s16, s12, 2
s_lshl_b32 s16, s16, 15
s_and_b32 s17, s12, 3
s_lshl_b32 s17, s17, 10
s_add_u32 s16, s16, s17
s_add_u32 s16, s16, s15
s_add_u32 s16, s16, {WS_K}
s_lshl_b32 s17, s12, 10
s_add_u32 s17, s17, s15
s_add_u32 s17, s17, {WS_V}
s_lshr_b32 s18, s12, 2
s_lshl_b32 s18, s18, 12
s_and_b32 s19, s12, 3
s_lshl_b32 s19, s19, 10
s_add_u32 s18, s18, s19
s_lshl_b32 s19, s12, 10
s_add_u32 s19, s19, 8192
v_lshlrev_b32 v{vL16}, 4, v{vT1}
; Q load
v_lshrrev_b32 v{vT0}, 5, v{vT1}
v_lshlrev_b32 v{vT0}, 15, v{vT0}
v_and_b32 v{vMx}, 31, v{vT1}
s_lshl_b32 s20, s14, 8
s_lshl_b32 s21, s12, 5
s_add_u32 s20, s20, s21
v_add_u32 v{vMx}, s20, v{vMx}
v_lshl_add_u32 v{vT0}, v{vMx}, 4, v{vT0}
s_add_u32 s21, s15, {WS_Q}
v_add_u32 v{vT0}, s21, v{vT0}
buffer_load_dwordx4 v[{QF}:{QF+3}], v{vT0}, s[8:11], 0 offen
s_mov_b32 s23, 0
""")
    def dma_issue():
        return f"""
s_and_b32 s22, s23, 7
s_lshl_b32 s27, s22, 12
s_add_u32 s27, s27, s16
s_and_b32 s28, s23, 3
s_lshl_b32 s28, s28, 14
s_add_u32 s29, s18, s28
s_mov_b32 m0, s29
s_nop 0
buffer_load_dwordx4 v{vL16}, s[8:11], s27 offen lds
s_lshl_b32 s27, s22, 13
s_add_u32 s27, s27, s17
s_add_u32 s29, s19, s28
s_mov_b32 m0, s29
s_nop 0
buffer_load_dwordx4 v{vL16}, s[8:11], s27 offen lds
s_add_u32 s23, s23, 1
"""
    for c in range(3):
        e(dma_issue())
    e(f"""
v_lshrrev_b32 v{vT0}, 5, v{vT1}          ; half
v_lshlrev_b32 v{vLK}, 12, v{vT0}
v_and_b32 v{vMx}, 31, v{vT1}
v_lshl_add_u32 v{vLK}, v{vMx}, 4, v{vLK}
v_and_b32 v{vMx}, 15, v{vT1}
v_lshrrev_b32 v{vD}, 2, v{vMx}
v_lshlrev_b32 v{vD}, 5, v{vD}
v_and_b32 v{vMx}, 3, v{vMx}
v_lshl_add_u32 v{vD}, v{vMx}, 3, v{vD}
v_lshl_add_u32 v{vLV}, v{vT0}, 7, v{vD}
v_add_u32 v{vLV}, 8192, v{vLV}
v_xor_b32 v{vF}, 1, v{vT0}
v_lshl_add_u32 v{vD}, v{vF}, 7, v{vD}
v_add_u32 v{vD}, {CONST}, v{vD}
v_and_b32 v{vMx}, 16, v{vT1}
v_cmp_eq_u32 vcc, 0, v{vMx}
v_mov_b32 v{vMsk}, 0
v_mov_b32 v{vF}, -1
s_nop 1
v_cndmask_b32 v{vMsk}, v{vMsk}, v{vF}, vcc
v_cndmask_b32 v{vLV}, v{vD}, v{vLV}, vcc
v_mov_b32 v{vClamp}, 0xff800000
s_mov_b32 s21, {fbits(THR)}
""")
    for r in range(16):
        e(f"v_mov_b32 v{NEGM+r}, 0\nv_mov_b32 v{O+r}, 0")
    sync = "s_waitcnt vmcnt(2) lgkmcnt(0)\ns_barrier\n" + dma_issue()
    addr = f"""
s_add_u32 s26, s24, 16384
s_and_b32 s26, s26, 65535
v_add_u32 v{vKa}, s24, v{vLK}
v_add_u32 v{vKn}, s26, v{vLK}
v_and_b32 v{vT0}, s24, v{vMsk}
v_add_u32 v{vVa}, v{vT0}, v{vLV}
v_and_b32 v{vT0}, s26, v{vMsk}
v_add_u32 v{vVn}, v{vT0}, v{vLV}
"""
    e(f"""
s_mov_b32 s24, 0
s_mov_b32 s25, 0
s_mov_b32 s30, 1
{sync}
{addr}
s_branch K2_SCAN
K2_CHUNK:
""")
    for r in range(16):
        e(f"v_mov_b32 v{OS+r}, v{O+r}")
    for j in range(8):
        cur = S[j & 1]; nxt = S[1 - (j & 1)]
        if j + 2 < 8: ka = f"v{vKa} offset:{(j+2)*512}"
        else: ka = f"v{vKn} offset:{(j+2-8)*512}" if (j+2-8) else f"v{vKn}"
        e(f"""
; ---- tile {j}
s_waitcnt lgkmcnt(4)
v_mfma_f32_32x32x16_bf16 v[{nxt}:{nxt+15}], v[{KF}:{KF+3}], v[{QF}:{QF+3}], v[{NEGM}:{NEGM+15}]
ds_read_b128 v[{KF}:{KF+3}], {ka}""")
        pv1 = f"v_mfma_f32_32x32x16_bf16 v[{O}:{O+15}], v[{VF}:{VF+3}], v[{PB}:{PB+3}], v[{O}:{O+15}]"
        pv2 = f"v_mfma_f32_32x32x16_bf16 v[{O}:{O+15}], v[{VF+4}:{VF+7}], v[{PB+4}:{PB+7}], v[{O}:{O+15}]"
        ex = lambda r: f"v_exp_f32 v{cur+r}, v{cur+r}"
        cv = lambda r: f"v_cvt_pk_bf16_f32 v{PB+r}, v{cur+2*r}, v{cur+2*r+1}"
        if 'ord2' in abl:
            for r in range(16): e(ex(r))
            for r in range(8): e(cv(r))
            e("s_waitcnt lgkmcnt(1)"); e(pv1); e(pv2)
        elif 'ord3' in abl:
            for r in range(16):
                e(ex(r))
                if r >= 3 and r % 2 == 1: e(cv((r-3)//2))
                if r == 11: e("s_waitcnt lgkmcnt(1)"); e(pv1)
            e(cv(7)); e("s_nop 1"); e(pv2)
        elif 'ord4' in abl:
            for r in range(8): e(ex(r))
            for r in range(4): e(cv(r))
            for r in range(8, 12): e(ex(r))
            e("s_waitcnt lgkmcnt(1)"); e(pv1)
            for r in range(12, 16): e(ex(r))
            for r in range(4, 8): e(cv(r))
            e("s_nop 1"); e(pv2)
        else:
            for r in range(8): e(ex(r))
            for r in range(4): e(cv(r))
            e(ex(8)); e("s_waitcnt lgkmcnt(1)"); e(pv1)
            for r in range(9, 16): e(ex(r))
            for r in range(4, 8): e(cv(r))
            e("s_nop 1"); e(pv2)
        for q in range(4):
            if j + 1 < 8:
                e(f"ds_read_b64_tr_b16 v[{VF+2*q}:{VF+2*q+1}], v{vVa} offset:{(j+1)*1024 + q*256}")
            else:
                off = q*256
                e(f"ds_read_b64_tr_b16 v[{VF+2*q}:{VF+2*q+1}], v{vVn}" + (f" offset:{off}" if off else ""))
    e(f"""
s_add_u32 s25, s25, 1
s_nop 7
s_nop 7
v_cmp_nge_f32 vcc, s21, v{O+8}
s_cbranch_vccnz K2_REDO
s_cmp_eq_u32 s25, 8
s_cbranch_scc1 K2_DONE
s_mov_b32 s24, s26
{sync}
{addr}
s_branch K2_CHUNK
K2_REDO:
s_sub_u32 s25, s25, 1
""")
    for r in range(16):
        e(f"v_mov_b32 v{O+r}, v{OS+r}")
    e(f"""
K2_SCAN:
s_waitcnt lgkmcnt(0)
v_mov_b32 v{vMx}, 0xff800000
""")
    A = S[0]
    for t in range(8):
        e(f"""ds_read_b128 v[{KF}:{KF+3}], v{vKa} offset:{t*512}
s_waitcnt lgkmcnt(0)
v_mfma_f32_32x32x16_bf16 v[{A}:{A+15}], v[{KF}:{KF+3}], v[{QF}:{QF+3}], v[{NEGM}:{NEGM+15}]
s_nop 15
s_nop 3""")
        for r in range(0, 16, 2):
            e(f"v_max3_f32 v{vMx}, v{A+r}, v{A+r+1}, v{vMx}")
        if t == 0:
            e("s_cmp_eq_u32 s30, 1\ns_cbranch_scc1 K2_SCAN_DONE")
    e("K2_SCAN_DONE:\ns_mov_b32 s30, 0")
    e(f"""
v_mov_b32 v{vT0}, v{vMx}
s_nop 1
v_permlane32_swap_b32 v{vMx}, v{vT0}
s_nop 1
v_max_f32 v{vMx}, v{vMx}, v{vT0}
v_max_f32 v{vD}, v{vMx}, v{vClamp}
v_exp_f32_e64 v{vF}, -v{vD}
s_nop 0
v_min_f32 v{vF}, 1.0, v{vF}
""")
    for r in range(16):
        e(f"v_sub_f32 v{NEGM+r}, v{NEGM+r}, v{vD}")
    for r in range(16):
        e(f"v_mul_f32 v{O+r}, v{O+r}, v{vF}")
    e(f"""
v_mov_b32 v{vClamp}, 0
ds_read_b128 v[{KF}:{KF+3}], v{vKa}
s_waitcnt lgkmcnt(0)
v_mfma_f32_32x32x16_bf16 v[{S[0]}:{S[0]+15}], v[{KF}:{KF+3}], v[{QF}:{QF+3}], v[{NEGM}:{NEGM+15}]
ds_read_b128 v[{KF}:{KF+3}], v{vKa} offset:512
ds_read_b64_tr_b16 v[{VF}:{VF+1}], v{vVa}
ds_read_b64_tr_b16 v[{VF+2}:{VF+3}], v{vVa} offset:256
ds_read_b64_tr_b16 v[{VF+4}:{VF+5}], v{vVa} offset:512
ds_read_b64_tr_b16 v[{VF+6}:{VF+7}], v{vVa} offset:768
s_nop 7
s_branch K2_CHUNK
K2_DONE:
{"s_memtime s[44:45]" if instr else ""}
{"s_memrealtime s[46:47]" if instr else ""}
s_nop 7
v_rcp_f32 v{vF}, v{O+8}
s_nop 0
""")
    for r in range(8):
        e(f"v_mul_f32 v{O+r}, v{O+r}, v{vF}")
    e(f"""
v_cvt_pk_bf16_f32 v{PB}, v{O}, v{O+1}
v_cvt_pk_bf16_f32 v{PB+1}, v{O+2}, v{O+3}
v_cvt_pk_bf16_f32 v{PB+2}, v{O+4}, v{O+5}
v_cvt_pk_bf16_f32 v{PB+3}, v{O+6}, v{O+7}
v_and_b32 v{vT1}, 63, v0
v_and_b32 v{vMx}, 31, v{vT1}
v_add_u32 v{vMx}, s20, v{vMx}
s_mov_b32 s27, {ACT_LD}
v_mul_lo_u32 v{vMx}, v{vMx}, s27
v_lshrrev_b32 v{vT0}, 5, v{vT1}
v_lshl_add_u32 v{vMx}, v{vT0}, 3, v{vMx}
s_lshl_b32 s27, s13, 5
s_add_u32 s27, s27, {WS_ACT}
v_add_u32 v{vMx}, s27, v{vMx}
buffer_store_dwordx2 v[{PB}:{PB+1}], v{vMx}, s[8:11], 0 offen
buffer_store_dwordx2 v[{PB+2}:{PB+3}], v{vMx}, s[8:11], 0 offen offset:16
""")
    if instr:
        e(f"""
s_waitcnt lgkmcnt(0)
s_lshl_b32 s48, s2, 3
s_add_u32 s48, s48, s12
s_lshl_b32 s48, s48, 5
s_add_u32 s48, s48, 0x1000000
v_mov_b32 v16, s40
v_mov_b32 v17, s41
v_mov_b32 v18, s42
v_mov_b32 v19, s43
v_mov_b32 v20, s44
v_mov_b32 v21, s45
v_mov_b32 v22, s46
v_mov_b32 v23, s47
v_mov_b32 v24, s48
buffer_store_dwordx4 v[16:19], v24, s[8:11], 0 offen
buffer_store_dwordx4 v[20:23], v24, s[8:11], 0 offen offset:16
""")
    e("s_waitcnt vmcnt(0)\nK2_END:")
    return e.text()

if __name__ == "__main__":
    import sys
    from asmlib import *
    txt = k2_body(instr=True, abl=tuple(sys.argv[1:]))
    open("k2only.s", "w").write(file_text([f"; @launch kernel=k2_kernel grid=(256,1,1) block=(512,1,1) lds={K2_LDS}"], [kernel_text("k2_kernel", txt, vgpr=120)]))
```
